```python
import torch

def _softmax(x, axis=-1):
    return torch.softmax(x, dim=axis)
def _gelu(x):
    return torch.nn.functional.gelu(x, approximate="tanh")
def _silu(x):
    return torch.nn.functional.silu(x)
def _sigmoid(x):
    return torch.sigmoid(x)
def _layernorm(x, axis=-1, eps=1e-5):
    m = x.mean(dim=axis, keepdim=True)
    v = x.var(dim=axis, keepdim=True, unbiased=False)
    return (x - m) / torch.sqrt(v + eps)
def _scatter_add(tgt, idx, src, axis=0):
    return tgt.clone().index_add_(axis, idx, src)
def _segment_sum(src, seg, n):
    out = torch.zeros((n,) + src.shape[1:], dtype=src.dtype)
    return out.index_add_(0, seg, src)
def _pad(x, pw):
    flat = tuple(v for pair in reversed(pw) for v in pair)
    return torch.nn.functional.pad(x, flat)

kernel_name = 'concat_heads__softmax_full_mha__softmax_full_mha__prompt'

def setup_inputs():

    _w = (lambda a: (lambda t: t.to(torch.bfloat16) if t.is_floating_point() else t)(torch.as_tensor(a)))
    def _A_setup():
        B, S, D = 1, 2048, 512
        return {
            "x": _w((lambda *s: torch.randn(*s, dtype=torch.bfloat16) * 0.2)(B, S, D)),
            "wqkv": _w((lambda *s: torch.randn(*s, dtype=torch.bfloat16) * 0.2)(D, 3 * D)),
            "wo": _w((lambda *s: torch.randn(*s, dtype=torch.bfloat16) * 0.05)(D, D)),
        }
    _A_in = _A_setup()

    def _B_setup():
        B, S, D = 1, 2048, 512
        return {
            "x": _w((lambda *s: torch.randn(*s, dtype=torch.bfloat16) * 0.2)(B, S, D)),
            "wqkv": _w((lambda *s: torch.randn(*s, dtype=torch.bfloat16) * 0.2)(D, 3 * D)),
            "wo": _w((lambda *s: torch.randn(*s, dtype=torch.bfloat16) * 0.05)(D, D)),
        }
    _B_in = _B_setup()

    return {
        "A_x": _A_in["x"],
        "A_wqkv": _A_in["wqkv"],
        "A_wo": _A_in["wo"],
        "B_x": _B_in["x"],
        "B_wqkv": _B_in["wqkv"],
        "B_wo": _B_in["wo"],
    }

def reference(A_x, A_wqkv, A_wo, B_x, B_wqkv, B_wo):
    def _A_ref(x, wqkv, wo):
        B, S, D = x.shape
        H = 32; Dh = D // H
        qkv = (lambda x, *d: x.permute(*d))((x @ wqkv).reshape(B, S, 3, H, Dh), 2, 0, 3, 1, 4)
        q, k, v = qkv[0], qkv[1], qkv[2]
        scale = Dh ** -0.5
        scores = torch.einsum("bhqd,bhkd->bhqk", q, k) * scale
        p = _softmax(scores, axis=-1)
        o = torch.einsum("bhqk,bhkd->bhqd", p, v)
        return (lambda x, *d: x.permute(*d))(o, 0, 2, 1, 3).reshape(B, S, D) @ wo

    def _B_ref(x, wqkv, wo):
        B, S, D = x.shape
        H = 32; Dh = D // H
        qkv = (lambda x, *d: x.permute(*d))((x @ wqkv).reshape(B, S, 3, H, Dh), 2, 0, 3, 1, 4)
        q, k, v = qkv[0], qkv[1], qkv[2]
        scale = Dh ** -0.5
        scores = torch.einsum("bhqd,bhkd->bhqk", q, k) * scale
        p = _softmax(scores, axis=-1)
        o = torch.einsum("bhqk,bhkd->bhqd", p, v)
        return (lambda x, *d: x.permute(*d))(o, 0, 2, 1, 3).reshape(B, S, D) @ wo

    a = _A_ref(A_x, A_wqkv, A_wo)
    b = _B_ref(B_x, B_wqkv, B_wo)
    return torch.concatenate([a, b], axis=-1)
```

```python
import sys, math, struct

NAME = "concat_heads__softmax_full_mha__softmax_full_mha__prompt"
QF, KF, VF, OF = 0, 4 << 20, 8 << 20, 12 << 20
WS_BYTES = 16 << 20
CSCALE = 0.25 * math.log2(math.e)
def f32bits(x): return struct.unpack("<I", struct.pack("<f", x))[0]

class A:
    def __init__(self): self.l = []
    def __call__(self, s=""):
        for line in s.split("\n"):
            line = line.strip()
            if line: self.l.append(("" if line.endswith(":") or line.startswith(".") else "    ") + line)
    def text(self): return "\n".join(self.l) + "\n"

def vr(b, n): return f"v[{b}:{b+n-1}]"
def sr(b, n): return f"s[{b}:{b+n-1}]"

def kernel_head(a, name):
    a(f".globl {name}\n.p2align 8\n.type {name},@function\n{name}:")

def kd(name, vgpr, sgpr=102):
    acc = (vgpr + 3) // 4 * 4
    return f""".amdhsa_kernel {name}
  .amdhsa_next_free_vgpr {vgpr}
  .amdhsa_next_free_sgpr {sgpr}
  .amdhsa_accum_offset {acc}
  .amdhsa_group_segment_fixed_size 0
  .amdhsa_kernarg_size 72
  .amdhsa_user_sgpr_count 2
  .amdhsa_user_sgpr_kernarg_segment_ptr 1
  .amdhsa_system_sgpr_workgroup_id_x 1
.end_amdhsa_kernel
"""

def srd(a, d, base, nbytes):
    a(f"s_mov_b32 s{d}, s{base}\ns_mov_b32 s{d+1}, s{base+1}\ns_mov_b32 s{d+2}, {nbytes}\ns_mov_b32 s{d+3}, 0x00020000")

K1_R = 4
K1_SLOT = 40960
def gen_k1(a):
    n = "qkv_kernel"
    kernel_head(a, n)
    a(f"""
    s_cmp_ge_u32 s2, 256
    s_cbranch_scc1 {n}_end
    s_and_b32 s20, s2, 7            ; xcd
    s_lshr_b32 s21, s2, 3           ; j
    s_lshr_b32 s22, s20, 2          ; branch
    s_mul_i32 s23, s22, 24
    s_add_u32 s0, s0, s23
    s_addc_u32 s1, s1, 0
    s_load_dwordx4 s[4:7], s[0:1], 0      ; x, wqkv
    s_sub_u32 s0, s0, s23
    s_subb_u32 s1, s1, 0
    s_load_dwordx2 s[8:9], s[0:1], 64     ; ws
    s_bfe_u32 s24, s20, 0x10001     ; (xcd>>1)&1
    s_lshl_b32 s24, s24, 3
    s_lshr_b32 s25, s21, 2
    s_add_u32 s24, s24, s25         ; tb
    s_and_b32 s25, s20, 1
    s_lshl_b32 s25, s25, 2
    s_and_b32 s26, s21, 3
    s_add_u32 s25, s25, s26         ; g
    v_lshrrev_b32 v1, 6, v0
    v_and_b32 v2, 63, v0            ; lane
    s_nop 0
    v_readfirstlane_b32 s27, v1     ; wave
    s_nop 3
    s_cmp_ge_u32 s27, 4
    s_cbranch_scc1 {n}_loader
    """)
    XA = 4
    WA = 8
    FR = 12
    ACC = 52
    a(f"""
    s_lshr_b32 s28, s27, 1          ; th
    s_and_b32 s29, s27, 1           ; fh
    v_and_b32 v3, 31, v2            ; t
    v_lshrrev_b32 v9, 5, v2         ; h
    v_bfe_u32 v10, v3, 1, 3         ; (t>>1)&7
    s_lshl_b32 s30, s28, 13         ; th*64*128
    v_lshlrev_b32 v11, 7, v3        ; t*128
    v_add_u32 v11, s30, v11
    """)
    for ks in range(4):
        a(f"""
        v_add_u32 v1, {2*ks}, v9
        v_xor_b32 v1, v1, v10
        v_lshl_add_u32 v{XA+ks}, v1, 4, v11
        """)
    a(f"""
    v_bfe_u32 v10, v2, 2, 2         ; r
    v_lshl_add_u32 v11, v9, 3, v10  ; 8h+r
    v_lshlrev_b32 v11, 7, v11       ; *128
    v_bfe_u32 v1, v2, 4, 1          ; G&1
    v_lshlrev_b32 v1, 1, v1         ; 2*(G&1)
    v_bfe_u32 v3, v2, 1, 1          ; c>>1
    v_add_u32 v1, v1, v3
    s_lshl_b32 s30, s29, 2
    v_add_u32 v1, s30, v1           ; chunk
    v_lshrrev_b32 v3, 1, v10        ; r>>1
    v_lshlrev_b32 v3, 2, v3
    v_xor_b32 v1, v1, v3
    v_lshl_add_u32 v11, v1, 4, v11
    v_and_b32 v1, 1, v2
    v_lshl_add_u32 v{WA}, v1, 3, v11
    """)
    for i in range(96):
        a(f"v_mov_b32 v{ACC+i}, 0")
    def reads(ks, st):
        f = FR + 20 * st
        r = []
        for b in range(2):
            r.append(f"ds_read_b128 {vr(f+4*b,4)}, v{XA+ks} offset:{4096*b}")
        for sub in range(3):
            for rho in range(2):
                r.append(f"ds_read_b64_tr_b16 {vr(f+8+4*sub+2*rho,2)}, v{WA} offset:{16384+sub*8192+ks*2048+rho*512}")
        return [r[0]] + r[2:] + [r[1]]
    def mfmas(st):
        f = FR + 20 * st
        m = []
        for b in range(2):
            x = vr(f+4*b, 4)
            m.append(f"v_mfma_f32_32x32x16_bf16 {vr(ACC+16*b,16)}, {vr(f+8,4)}, {x}, {vr(ACC+16*b,16)}")
            m.append(f"v_mfma_f32_32x32x16_bf16 {vr(ACC+32+16*b,16)}, {vr(f+12,4)}, {x}, {vr(ACC+32+16*b,16)}")
            m.append(f"v_mfma_f32_32x32x16_bf16 {vr(ACC+64+16*b,16)}, {x}, {vr(f+16,4)}, {vr(ACC+64+16*b,16)}")
        return m
    a("s_barrier")
    for r in reads(0, 0): a(r)
    nk = 32
    for k in range(nk):
        stage, ks = divmod(k, 4)
        st = k & 1
        m = mfmas(st)
        a("s_waitcnt lgkmcnt(0)")
        if k == nk - 1:
            for x in m: a(x)
            break
        nks = (ks + 1) % 4
        if ks == 3:
            a(m[0])
            nslot = (stage + 1) % K1_R
            delta = K1_SLOT if nslot != 0 else -(K1_R - 1) * K1_SLOT
            for i in range(5):
                a(f"v_add_u32 v{XA+i}, {delta & 0xffffffff:#x}, v{XA+i}")
            a(m[1])
            a("s_barrier")
            rd = reads(nks, st ^ 1)
            a(rd[0]); a(rd[1]); a(rd[2])
            a(m[2]); a(rd[3]); a(rd[4]); a(rd[5])
            a(m[3]); a(rd[6]); a(rd[7])
            a(m[4]); a(m[5])
        else:
            rd = reads(nks, st ^ 1)
            a(m[0]); a(rd[0]); a(rd[1])
            a(m[1]); a(rd[2]); a(rd[3])
            a(m[2]); a(rd[4]); a(rd[5])
            a(m[3]); a(rd[6]); a(rd[7])
            a(m[4]); a(m[5])
    srd(a, 12, 8, WS_BYTES)
    a(f"""
    s_lshl_b32 s30, s22, 5          ; branch*32
    s_lshl_b32 s31, s25, 2          ; 4g
    s_add_u32 s30, s30, s31
    s_lshl_b32 s31, s29, 1
    s_add_u32 s30, s30, s31
    s_lshl_b32 s30, s30, 6          ; *64
    s_lshl_b32 s31, s24, 2
    s_add_u32 s30, s30, s31
    s_lshl_b32 s31, s28, 1
    s_add_u32 s30, s30, s31
    s_lshl_b32 s30, s30, 10
    s_add_u32 s31, s30, 0x10000     ; head1
    s_add_u32 s32, s30, {KF}
    s_add_u32 s33, s31, {KF}
    s_add_u32 s34, s30, {VF}
    s_mov_b32 s35, {f32bits(CSCALE):#x}
    v_lshlrev_b32 v4, 4, v2
    v_and_b32 v3, 31, v2            ; t
    v_and_b32 v5, 0x13, v3
    v_bfe_u32 v6, v3, 2, 1
    v_lshl_or_b32 v5, v6, 3, v5
    v_bfe_u32 v6, v3, 3, 1
    v_lshl_or_b32 v5, v6, 2, v5     ; swap23(t)
    v_lshlrev_b32 v5, 4, v5
    v_lshl_add_u32 v5, v9, 9, v5    ; + h*512
    v_and_b32 v6, 15, v2
    v_lshlrev_b32 v6, 4, v6         ; d*16
    v_lshl_add_u32 v6, v9, 8, v6    ; + h*256
    v_bfe_u32 v7, v2, 4, 1
    v_lshl_add_u32 v6, v7, 16, v6   ; + (n>>4)*65536
    s_nop 7
    """)
    T = FR
    tcount = 0
    for sub in range(3):
        for b in range(2):
            base = ACC + 32 * sub + 16 * b
            if sub == 0:
                for i in range(16):
                    a(f"v_mul_f32 v{base+i}, s35, v{base+i}")
            for half in range(2):
                t = T + 4 * (tcount % 10); tcount += 1
                for i in range(4):
                    a(f"v_cvt_pk_bf16_f32 v{t+i}, v{base+8*half+2*i}, v{base+8*half+2*i+1}")
                if sub == 0:
                    a(f"buffer_store_dwordx4 {vr(t,4)}, v4, s[12:15], s{30+half} offen offset:{1024*b}")
                elif sub == 1:
                    a(f"buffer_store_dwordx4 {vr(t,4)}, v5, s[12:15], s{32+half} offen offset:{1024*b}")
                else:
                    a(f"buffer_store_dwordx4 {vr(t,4)}, v6, s[12:15], s34 offen offset:{1024*b+512*half}")
    a("s_endpgm")
    a(f"{n}_loader:")
    a(f"""
    s_sub_u32 s27, s27, 4           ; j
    v_lshrrev_b32 v3, 3, v2         ; l>>3
    v_and_b32 v4, 7, v2             ; p
    v_lshrrev_b32 v5, 4, v2         ; l>>4
    """)
    XO = 8; WO = 12
    for il in range(4):
        a(f"""
        v_add_u32 v6, {4*(il&1)}, v5
        v_xor_b32 v6, v6, v4
        v_lshlrev_b32 v6, 4, v6
        v_lshl_add_u32 v6, v3, 10, v6
        v_add_u32 v{XO+il}, {il*(8192-1024)}, v6
        """)
    a(f"""
    v_and_b32 v6, 1, v5
    v_lshlrev_b32 v6, 2, v6
    v_xor_b32 v6, v6, v4
    v_lshlrev_b32 v6, 4, v6
    v_mul_u32_u24 v7, 3072, v3
    v_add_u32 v6, v6, v7
    """)
    for sub in range(3):
        for ii in range(2):
            a(f"v_add_u32 v{WO+2*sub+ii}, {ii*(8*3072-1024)+sub*1024}, v6")
    a("s_waitcnt lgkmcnt(0)")
    srd(a, 12, 4, 2048*1024)
    srd(a, 16, 6, 512*3072)
    a(f"""
    s_lshl_b32 s30, s24, 7
    s_lshl_b32 s31, s27, 5
    s_add_u32 s30, s30, s31
    s_lshl_b32 s30, s30, 10
    s_mul_i32 s31, s27, {16*3072}
    s_lshl_b32 s32, s25, 7
    s_add_u32 s31, s31, s32
    s_lshl_b32 s33, s27, 12
    s_lshl_b32 s34, s27, 11
    s_add_u32 s34, s34, 16384
    """)
    def issue(stage):
        slot = (stage % K1_R) * K1_SLOT
        a(f"s_add_u32 m0, s33, {slot}")
        a("s_nop 0")
        for il in range(4):
            a(f"buffer_load_dwordx4 v{XO+il}, s[12:15], s30 offen offset:{1024*il} lds")
        for sub in range(3):
            a(f"s_add_u32 m0, s34, {slot+sub*8192}")
            a("s_nop 0")
            for ii in range(2):
                a(f"buffer_load_dwordx4 v{WO+2*sub+ii}, s[16:19], s31 offen offset:{1024*ii} lds")
        a("s_add_u32 s30, s30, 128")
        a(f"s_add_u32 s31, s31, {64*3072}")
    last = -1
    for s in range(K1_R):
        issue(s); last = s
    for s in range(8):
        a(f"s_waitcnt vmcnt({10*(last-s)})")
        a("s_barrier")
        if s >= 1 and s - 1 + K1_R <= 7:
            issue(s - 1 + K1_R); last = s - 1 + K1_R
    a(f"{n}_end:")
    a("s_endpgm")
    return n, 148

K2_VBASE = 65536
K2_VSTR = 1040
K2_LDS = 65536 + 66 * 1040
def gen_k2(a):
    n = "attn_kernel"
    kernel_head(a, n)
    KA, V0A, V1A, IDX = 4, 5, 6, 7
    QFR = 8
    KFR = 16
    V0F = 24
    V1F = 32
    CC = 40
    SS = 72
    OO = 104
    TMP = 136
    NV = 144
    a(f"""
    s_cmp_ge_u32 s2, 256
    s_cbranch_scc1 {n}_end
    s_load_dwordx2 s[8:9], s[0:1], 64     ; ws
    s_and_b32 s20, s2, 7
    s_lshl_b32 s20, s20, 3
    s_lshr_b32 s21, s2, 5
    s_add_u32 s20, s20, s21         ; bh
    s_bfe_u32 s21, s2, 0x20003      ; quarter
    v_lshrrev_b32 v1, 6, v0
    v_and_b32 v2, 63, v0            ; lane
    v_lshlrev_b32 v{KA}, 4, v2      ; lane*16
    v_readfirstlane_b32 s27, v1     ; wave
    s_lshl_b32 s22, s20, 16         ; bh*64KB
    s_lshl_b32 s23, s21, 4
    s_lshl_b32 s24, s27, 1
    s_add_u32 s23, s23, s24         ; qt0
    s_lshl_b32 s24, s23, 10
    s_add_u32 s24, s24, s22         ; Q offset
    s_lshl_b32 s25, s27, 10         ; w*1024
    s_add_u32 s26, s22, s25
    s_add_u32 s28, s26, {KF}
    s_add_u32 s29, s26, {VF}
    s_mul_i32 s30, s27, {K2_VSTR}
    s_add_u32 s30, s30, {K2_VBASE}
    s_waitcnt lgkmcnt(0)
    """)
    srd(a, 12, 8, WS_BYTES)
    a(f"buffer_load_dwordx4 {vr(QFR,4)}, v{KA}, s[12:15], s24 offen")
    a(f"buffer_load_dwordx4 {vr(QFR+4,4)}, v{KA}, s[12:15], s24 offen offset:1024")
    for i in range(8):
        a(f"s_add_u32 m0, s25, {8192*i}")
        a(f"s_nop 0")
        a(f"buffer_load_dwordx4 v{KA}, s[12:15], s28 offen lds")
        a(f"s_add_u32 m0, s30, {8*K2_VSTR*i}")
        a(f"s_add_u32 s28, s28, 8192")
        a(f"buffer_load_dwordx4 v{KA}, s[12:15], s29 offen lds")
        a(f"s_add_u32 s29, s29, 8192")
    a(f"""
    v_mov_b32 v{IDX}, 0xdddddddd
    v_mov_b32 v{TMP}, 0x3f803f80
    v_mov_b32 v{TMP+1}, 0x3f803f80
    v_mov_b32 v{TMP+2}, 0x3f803f80
    v_mov_b32 v{TMP+3}, 0x3f803f80
    v_mul_u32_u24 v3, {K2_VSTR}, v2
    v_add_u32 v3, {K2_VBASE+1024}, v3
    s_cmp_lg_u32 s27, 0
    s_cbranch_scc1 {n}_noones
    ds_write_b128 v3, {vr(TMP,4)}
    {n}_noones:
    v_and_b32 v3, 15, v2
    v_lshlrev_b32 v3, 4, v3         ; d*16
    v_lshrrev_b32 v1, 5, v2         ; ha
    v_lshl_add_u32 v3, v1, 8, v3
    v_and_b32 v1, 16, v2
    v_cmp_eq_u32 vcc, 0, v1
    v_mov_b32 v1, 1024
    v_add_u32 v{TMP+4}, 512, v3
    v_cndmask_b32 v{V0A}, v1, v3, vcc
    v_cndmask_b32 v{V1A}, v1, v{TMP+4}, vcc
    v_add_u32 v{V0A}, {K2_VBASE}, v{V0A}
    v_add_u32 v{V1A}, {K2_VBASE}, v{V1A}
    s_mov_b32 s40, 0
    s_waitcnt vmcnt(14) lgkmcnt(0)
    s_barrier
    ds_read_b128 {vr(KFR,4)}, v{KA}
    s_waitcnt lgkmcnt(0)
    v_mfma_f32_32x32x16_bf16 {vr(SS,16)}, {vr(KFR,4)}, {vr(QFR,4)}, 0
    v_mfma_f32_32x32x16_bf16 {vr(SS+16,16)}, {vr(KFR,4)}, {vr(QFR+4,4)}, 0
    s_nop 15
    """)
    def maxtree(dst, S, init):
        if init:
            a(f"v_max3_f32 v{dst}, v{S}, v{S+1}, v{S+2}")
            rest = list(range(S+3, S+16))
        else:
            rest = list(range(S, S+16))
        while len(rest) >= 2:
            a(f"v_max3_f32 v{dst}, v{dst}, v{rest[0]}, v{rest[1]}"); rest = rest[2:]
        if rest:
            a(f"v_max_f32 v{dst}, v{dst}, v{rest[0]}")
    maxtree(TMP, SS, True)
    maxtree(TMP+1, SS+16, True)
    a(f"{n}_setc:")
    a(f"""
    v_mov_b32 v{TMP+2}, v{TMP}
    v_mov_b32 v{TMP+3}, v{TMP+1}
    s_nop 1
    v_permlane32_swap_b32 v{TMP}, v{TMP+2}
    v_permlane32_swap_b32 v{TMP+1}, v{TMP+3}
    s_nop 1
    v_max_f32 v{TMP}, v{TMP}, v{TMP+2}
    v_max_f32 v{TMP+1}, v{TMP+1}, v{TMP+3}
    """)
    for q in range(2):
        for i in range(16):
            a(f"v_mul_f32 v{CC+16*q+i}, -1.0, v{TMP+q}")
    for i in range(32):
        a(f"v_mov_b32 v{OO+i}, 0")
    a(f"""
    ds_read_b128 {vr(KFR,4)}, v{KA}
    ds_read_b128 {vr(KFR+4,4)}, v{KA} offset:1024
    ds_read_b128 {vr(V0F,4)}, v{V0A}
    ds_read_b128 {vr(V1F,4)}, v{V1A}
    """)
    for i in range(8):
        a(f"v_mov_b32 v{SS+16+8+i}, 0")
    for i in range(4):
        a(f"v_mov_b32 v{V1F+4+i}, 0")
    a(f"""
    s_waitcnt lgkmcnt(0)
    v_mfma_f32_32x32x16_bf16 {vr(SS,16)}, {vr(KFR,4)}, {vr(QFR,4)}, {vr(CC,16)}
    s_mov_b32 s41, 0
    s_nop 11
    """)
    a(".p2align 6")
    a(f"{n}_loop:")
    for t in range(8):
        for q in range(2):
            S = SS + 16 * q
            Sn = SS + 16 * (q ^ 1)
            ex = [f"v_exp_f32 v{S+i}, v{S+i}" for i in range(16)]
            pt, pq = (t, 0) if q == 1 else (t - 1, 1)
            pv1 = f"v_smfmac_f32_32x32x32_bf16 {vr(OO+16*pq,16)}, {vr(V1F+4*(pt&1),4)}, {vr(Sn+8,8)}, v{IDX}"
            nt, nq = (t, 1) if q == 0 else (t + 1, 0)
            qk = f"v_mfma_f32_32x32x16_bf16 {vr(Sn,16)}, {vr(KFR+4*(nt&1),4)}, {vr(QFR+4*nq,4)}, {vr(CC+16*nq,16)}"
            pv0 = f"v_smfmac_f32_32x32x32_bf16 {vr(OO+16*q,16)}, {vr(V0F+4*(t&1),4)}, {vr(S,8)}, v{IDX}"
            if q == 0:
                a("s_waitcnt lgkmcnt(0)")
            a(ex[0]); a(ex[1]); a(pv1); a(ex[2]); a(ex[3]); a(ex[4]); a(qk)
            for i in range(5, 10): a(ex[i])
            a(pv0)
            if q == 0:
                if t == 6:
                    a(f"""
                    s_cmp_gt_u32 s41, 2
                    s_cbranch_scc0 {n}_sync
                    {n}_syncdone:
                    """)
                a(ex[10])
                a(f"ds_read_b128 {vr(V0F+4*((t+1)&1),4)}, v{V0A} offset:{K2_VSTR*(t+1)}")
                a(ex[11]); a(ex[12])
                a(f"ds_read_b128 {vr(KFR+4*(t&1),4)}, v{KA} offset:{1024*(t+2)}")
                a(ex[13]); a(ex[14])
                a(f"ds_read_b128 {vr(V1F+4*((t+1)&1),4)}, v{V1A} offset:{K2_VSTR*(t+1)}")
                a(ex[15])
            else:
                if t == 7:
                    a(f"v_add_u32 v{KA}, 8192, v{KA}")
                    a(f"v_add_u32 v{V0A}, {8*K2_VSTR}, v{V0A}")
                    a(f"v_add_u32 v{V1A}, {8*K2_VSTR}, v{V1A}")
                    a("s_add_u32 s41, s41, 1")
                    a("s_cmp_lt_u32 s41, 8")
                for i in range(10, 16): a(ex[i])
    a(f"s_cbranch_scc1 {n}_loop")
    a(f"""
    s_nop 1
    v_smfmac_f32_32x32x32_bf16 {vr(OO+16,16)}, {vr(V1F+4,4)}, {vr(SS+16+8,8)}, v{IDX}
    v_subrev_u32 v{KA}, {8*8192}, v{KA}
    v_subrev_u32 v{V0A}, {64*K2_VSTR}, v{V0A}
    v_subrev_u32 v{V1A}, {64*K2_VSTR}, v{V1A}
    s_waitcnt lgkmcnt(0)
    s_nop 15
    s_cmp_lg_u32 s40, 0
    s_cbranch_scc1 {n}_final
    """)
    for q in range(2):
        O = OO + 16 * q
        a(f"v_max3_f32 v{TMP+q}, |v{O}|, |v{O+1}|, |v{O+2}|")
        a(f"v_max3_f32 v{TMP+q}, v{TMP+q}, |v{O+3}|, |v{O+4}|")
        a(f"v_max3_f32 v{TMP+q}, v{TMP+q}, |v{O+5}|, |v{O+6}|")
        a(f"v_max_f32 v{TMP+q}, v{TMP+q}, |v{O+7}|")
    a(f"""
    s_mov_b32 s42, 0x5f800000       ; 2^64
    s_mov_b32 s43, 0x7f000000       ; 2^127
    v_cmp_nlt_f32 s[44:45], v{OO+8}, s42
    v_cmp_nlt_f32 s[46:47], v{OO+16+8}, s42
    v_cmp_nlt_f32 s[48:49], v{TMP}, s43
    v_cmp_nlt_f32 s[50:51], v{TMP+1}, s43
    """)
    for q in range(2):
        O = OO + 16 * q
        a(f"v_add_f32 v{TMP+2+q}, v{O}, v{O+1}")
        for i in range(2, 8):
            a(f"v_add_f32 v{TMP+2+q}, v{TMP+2+q}, v{O+i}")
    a(f"""
    v_cmp_u_f32 s[52:53], v{TMP+2}, v{TMP+3}
    s_nop 3
    s_or_b64 s[44:45], s[44:45], s[46:47]
    s_or_b64 s[48:49], s[48:49], s[50:51]
    s_or_b64 s[44:45], s[44:45], s[48:49]
    s_or_b64 s[44:45], s[44:45], s[52:53]
    s_cbranch_scc1 {n}_fallback
    {n}_final:
    v_rcp_f32 v{TMP}, v{OO+8}
    v_rcp_f32 v{TMP+1}, v{OO+16+8}
    s_lshr_b32 s30, s20, 5          ; branch
    s_lshl_b32 s30, s30, 6
    s_add_u32 s30, s30, s23         ; branch*64+qt0
    s_lshl_b32 s30, s30, 5
    s_and_b32 s31, s20, 31
    s_add_u32 s30, s30, s31         ; *32 + head
    s_lshl_b32 s30, s30, 10
    s_add_u32 s30, s30, {OF}
    s_add_u32 s31, s30, 32768
    """)
    for q in range(2):
        O = OO + 16 * q
        for i in range(8):
            a(f"v_mul_f32 v{O+i}, v{O+i}, v{TMP+q}")
        for i in range(4):
            a(f"v_cvt_pk_bf16_f32 v{SS+4*q+i}, v{O+2*i}, v{O+2*i+1}")
        a(f"buffer_store_dwordx4 {vr(SS+4*q,4)}, v{KA}, s[12:15], s{30+q} offen")
    a(f"{n}_end:")
    a("s_endpgm")
    a(f"""
    {n}_sync:
    s_cmp_lg_u32 s40, 0
    s_cbranch_scc1 {n}_syncdone
    s_cmp_eq_u32 s41, 1
    s_cbranch_scc1 {n}_syncdone
    s_cmp_eq_u32 s41, 0
    s_cbranch_scc1 {n}_sync0
    s_waitcnt vmcnt(0)
    s_barrier
    s_branch {n}_syncdone
    {n}_sync0:
    s_waitcnt vmcnt(10)
    s_barrier
    s_branch {n}_syncdone
    """)
    a(f"""
    {n}_fallback:
    s_mov_b32 s40, 1
    s_mov_b32 s41, 0
    v_mov_b32 v{TMP}, 0xff800000
    v_mov_b32 v{TMP+1}, 0xff800000
    v_mov_b32 v{TMP+4}, v{KA}
    {n}_fbloop:
    ds_read_b128 {vr(KFR,4)}, v{TMP+4}
    v_add_u32 v{TMP+4}, 1024, v{TMP+4}
    s_waitcnt lgkmcnt(0)
    v_mfma_f32_32x32x16_bf16 {vr(SS,16)}, {vr(KFR,4)}, {vr(QFR,4)}, 0
    v_mfma_f32_32x32x16_bf16 {vr(SS+16,16)}, {vr(KFR,4)}, {vr(QFR+4,4)}, 0
    s_nop 15
    """)
    maxtree(TMP, SS, False)
    maxtree(TMP+1, SS+16, False)
    a(f"""
    s_add_u32 s41, s41, 1
    s_cmp_lt_u32 s41, 64
    s_cbranch_scc1 {n}_fbloop
    s_branch {n}_setc
    """)
    return n, NV

def gen_k3(a):
    n = "oproj_kernel"
    kernel_head(a, n)
    OFR = 16
    WFR = 144
    ACC = 160
    NV = 192
    a(f"""
    s_cmp_ge_u32 s2, 256
    s_cbranch_scc1 {n}_end
    s_and_b32 s20, s2, 7            ; xcd
    s_lshr_b32 s21, s2, 3           ; j
    s_lshr_b32 s22, s20, 2          ; branch
    s_mul_i32 s23, s22, 24
    s_add_u32 s0, s0, s23
    s_addc_u32 s1, s1, 0
    s_load_dwordx2 s[4:5], s[0:1], 16     ; wo
    s_sub_u32 s0, s0, s23
    s_subb_u32 s1, s1, 0
    s_load_dwordx2 s[6:7], s[0:1], 48     ; out
    s_load_dwordx2 s[8:9], s[0:1], 64     ; ws
    s_bfe_u32 s24, s20, 0x10001
    s_lshl_b32 s24, s24, 3
    s_lshr_b32 s25, s21, 2
    s_add_u32 s24, s24, s25         ; tb
    s_and_b32 s25, s20, 1
    s_lshl_b32 s25, s25, 2
    s_and_b32 s26, s21, 3
    s_add_u32 s25, s25, s26         ; cb
    v_lshrrev_b32 v1, 6, v0
    v_and_b32 v2, 63, v0
    v_lshlrev_b32 v4, 4, v2         ; lane*16
    v_readfirstlane_b32 s27, v1     ; wave
    v_lshrrev_b32 v3, 3, v2
    v_and_b32 v5, 7, v2
    v_bfe_u32 v6, v2, 4, 1
    v_lshlrev_b32 v6, 1, v6
    v_xor_b32 v5, v5, v6
    v_lshlrev_b32 v5, 4, v5
    v_lshl_add_u32 v5, v3, 10, v5
    s_lshl_b32 s28, s22, 6
    s_lshl_b32 s29, s24, 2
    s_add_u32 s28, s28, s29
    s_add_u32 s28, s28, s27
    s_lshl_b32 s28, s28, 15         ; *32 heads*1024
    s_add_u32 s28, s28, {OF}
    s_lshl_b32 s29, s27, 13
    s_lshl_b32 s30, s25, 7
    s_add_u32 s29, s29, s30
    s_lshl_b32 s31, s27, 10
    s_waitcnt lgkmcnt(0)
    """)
    srd(a, 12, 8, WS_BYTES)
    srd(a, 16, 4, 512*1024)
    for c in range(4):
        for i in range(4):
            a(f"s_add_u32 m0, s31, {(c*16+i*4)*1024}")
            a("s_nop 0")
            a(f"buffer_load_dwordx4 v5, s[16:19], s29 offen lds")
            a(f"s_add_u32 s29, s29, {32*1024}")
        for hh in range(8):
            h = c * 8 + hh
            a(f"buffer_load_dwordx4 {vr(OFR+4*h,4)}, v4, s[12:15], s28 offen offset:{1024*(h%4)}")
            if h % 4 == 3: a("s_add_u32 s28, s28, 4096")
    a(f"""
    v_bfe_u32 v6, v2, 2, 2          ; r
    v_lshrrev_b32 v7, 5, v2         ; h
    v_lshl_add_u32 v8, v7, 2, v6    ; 4h+r
    v_lshlrev_b32 v8, 7, v8
    v_and_b32 v9, 1, v2             ; c&1
    v_lshlrev_b32 v9, 2, v9
    v_bfe_u32 v10, v2, 4, 1         ; G&1
    v_add_u32 v9, v9, v10
    v_and_b32 v10, 2, v6            ; 2*((r>>1)&1)
    v_xor_b32 v11, v9, v10
    v_xor_b32 v12, 2, v11
    v_bfe_u32 v10, v2, 1, 1         ; c>>1
    v_lshl_add_u32 v8, v10, 3, v8
    v_lshl_add_u32 v10, v11, 4, v8
    v_lshl_add_u32 v11, v12, 4, v8
    """)
    for i in range(32):
        a(f"v_mov_b32 v{ACC+i}, 0")
    def reads(h, st):
        f = WFR + 8 * st
        return [f"ds_read_b64_tr_b16 {vr(f+4*b+2*rho,2)}, v{10+b} offset:{h*2048+rho*1024}" for b in range(2) for rho in range(2)]
    for c in range(4):
        a(f"s_waitcnt vmcnt({36-12*c})")
        a("s_barrier")
        for r in reads(8*c, 0): a(r)
        for hh in range(8):
            h = 8 * c + hh
            st = hh & 1
            if hh < 7:
                for r in reads(h + 1, st ^ 1): a(r)
                a("s_waitcnt lgkmcnt(4)")
            else:
                a("s_waitcnt lgkmcnt(0)")
            for b in range(2):
                a(f"v_mfma_f32_32x32x16_bf16 {vr(ACC+16*b,16)}, {vr(WFR+8*st+4*b,4)}, {vr(OFR+4*h,4)}, {vr(ACC+16*b,16)}")
    srd(a, 12, 6, 2048*2048)
    a(f"""
    v_and_b32 v3, 31, v2
    v_lshlrev_b32 v3, 11, v3        ; t*2048
    v_lshl_add_u32 v3, v7, 6, v3    ; + h*64
    s_lshl_b32 s28, s24, 2
    s_add_u32 s28, s28, s27         ; qt
    s_lshl_b32 s28, s28, 16         ; *32 tokens*2048
    s_lshl_b32 s29, s22, 10
    s_add_u32 s28, s28, s29
    s_add_u32 s28, s28, s30         ; + cb*128
    s_nop 7
    """)
    for b in range(2):
        for i in range(8):
            a(f"v_cvt_pk_bf16_f32 v{OFR+8*b+i}, v{ACC+16*b+2*i}, v{ACC+16*b+2*i+1}")
        a(f"buffer_store_dwordx4 {vr(OFR+8*b,4)}, v3, s[12:15], s28 offen offset:{32*b}")
        a(f"buffer_store_dwordx4 {vr(OFR+8*b+4,4)}, v3, s[12:15], s28 offen offset:{32*b+16}")
    a(f"{n}_end:")
    a("s_endpgm")
    return n, NV

def main(path):
    a = A()
    ks = [gen_k1(a), gen_k2(a), gen_k3(a)]
    head = f"""; Two independent MHA blocks (QKV projection -> softmax attention -> output projection), concatenated.
; @launch kernel=qkv_kernel grid=(256,1,1) block=(512,1,1) lds={K1_R*K1_SLOT}
; @launch kernel=attn_kernel grid=(256,1,1) block=(512,1,1) lds={K2_LDS}
; @launch kernel=oproj_kernel grid=(256,1,1) block=(256,1,1) lds=65536
.amdgcn_target "amdgcn-amd-amdhsa--gfx950"
.text
"""
    tail = '.section .rodata,"a"\n'
    for n, v in ks:
        tail += ".p2align 6\n" + kd(n, v)
    open(path, "w").write(head + a.text() + tail)

if __name__ == "__main__":
    main(sys.argv[1] if len(sys.argv) > 1 else f"cdna_kernels/{NAME}.s")
```

```python
import sys, math, struct

NAME = "concat_heads__softmax_full_mha__softmax_full_mha__prompt"
KF, VF, OF = 0, 4 << 20, 8 << 20
KVFLAG = 12 << 20
OFLAG = KVFLAG + (64 << 10)
WS_BYTES = 13 << 20
CSCALE = 0.25 * math.log2(math.e)
def f32bits(x): return struct.unpack("<I", struct.pack("<f", x))[0]
OPT = dict(PRIO=1, FORCEFB=0)
DIAG = False
DIAG_OFF = 16 << 20

class A:
    def __init__(self): self.l = []
    def __call__(self, s=""):
        for line in s.split("\n"):
            line = line.strip()
            if line: self.l.append(("" if line.endswith(":") or line.startswith(".") else "    ") + line)
    def text(self): return "\n".join(self.l) + "\n"

def vr(b, n): return f"v[{b}:{b+n-1}]"

NSTAMP = 14
def stamp(a, i):
    if DIAG:
        a(f"s_memtime s[{64+2*i}:{65+2*i}]")
        a("s_waitcnt lgkmcnt(0)")
def stamp_real(a, i):
    if DIAG:
        a(f"s_memrealtime s[{64+2*i}:{65+2*i}]")
def diag_store(a):
    if not DIAG: return
    a("s_waitcnt lgkmcnt(0)")
    a(f"s_mul_i32 s96, s2, 9")
    a(f"s_add_u32 s96, s96, s27")
    a("s_lshl_b32 s96, s96, 7")
    a(f"s_add_u32 s96, s96, {DIAG_OFF}")
    a(f"s_mov_b32 s14, {32<<20}")
    a("s_mov_b64 exec, 1")
    a("v_mov_b32 v1, 0")
    for j in range(8):
        for i in range(4):
            a(f"v_mov_b32 v{4+i}, s{64+4*j+i}")
        a(f"buffer_store_dwordx4 v[4:7], v1, s[12:15], s96 offen offset:{16*j}")
        a("s_nop 1")

def srd(a, d, base, nbytes):
    a(f"s_mov_b32 s{d}, s{base}\ns_mov_b32 s{d+1}, s{base+1}\ns_mov_b32 s{d+2}, {nbytes}\ns_mov_b32 s{d+3}, 0x00020000")

P1_SLOT = 45056
QX = 3 * P1_SLOT
TOK = QX + 8192
VSTR = 1056
P2_SLOT = 16384 + 16 * VSTR
WO_LDS = 98304
LDS_BYTES = 163840
SPIN_MAX = 1 << 22

def gen(a):
    n = NAME + "_kernel"
    L = lambda s: f".L_{s}"
    a(f".globl {n}\n.p2align 8\n.type {n},@function\n{n}:")
    a(f"""
    s_load_dwordx16 s[36:51], s[0:1], 0
    s_load_dwordx2 s[8:9], s[0:1], 64
    s_cmp_ge_u32 s2, 256
    s_cbranch_scc1 {L('end')}
    """)
    stamp_real(a, 14); stamp(a, 0)
    a(f"""
    v_lshrrev_b32 v1, 6, v0
    v_and_b32 v2, 63, v0            ; lane
    s_bfe_u32 s22, s2, 0x10002      ; b = (id>>2)&1
    v_readfirstlane_b32 s27, v1     ; wave
    s_and_b32 s25, s2, 3
    s_lshl_b32 s25, s25, 2
    s_lshr_b32 s21, s2, 6
    s_add_u32 s25, s25, s21
    s_bfe_u32 s24, s2, 0x30003
    s_lshl_b32 s26, s22, 4
    s_add_u32 s26, s26, s25         ; b*16+g2
    s_cmp_lt_u32 s27, 4
    s_cbranch_scc1 {L('p1c')}
    s_cmp_eq_u32 s27, 8
    s_cbranch_scc1 {L('helper')}
    """)
    XO = 8; WO = 12
    a(f"""
    s_sub_u32 s28, s27, 4           ; j
    v_lshrrev_b32 v3, 3, v2         ; l>>3
    v_and_b32 v4, 7, v2
    v_lshrrev_b32 v5, 4, v2         ; l>>4
    v_xor_b32 v6, v5, v4
    v_lshlrev_b32 v6, 4, v6
    v_lshl_add_u32 v{XO}, v3, 10, v6
    v_xor_b32 v6, 64, v{XO}
    v_add_u32 v{XO+1}, {7168}, v6
    v_add_u32 v{XO+2}, {2*7168}, v{XO}
    v_add_u32 v{XO+3}, {3*7168}, v6
    v_lshrrev_b32 v3, 2, v2         ; row = l>>2
    v_and_b32 v4, 3, v2
    v_mul_u32_u24 v3, 3072, v3
    v_lshl_add_u32 v{WO}, v4, 4, v3
    s_lshl_b32 s30, s24, 8
    s_lshl_b32 s31, s28, 6
    s_add_u32 s30, s30, s31
    s_lshl_b32 s30, s30, 10         ; x soffset
    s_mul_i32 s31, s28, {16*3072}
    s_lshl_b32 s32, s25, 6
    s_add_u32 s31, s31, s32         ; W soffset
    s_lshl_b32 s33, s28, 13
    s_mul_i32 s34, s28, 3072
    s_add_u32 s34, s34, 32768
    s_sub_u32 s34, s34, s33
    s_mov_b32 s35, 0                ; stage
    s_mov_b32 s29, 0                ; slot
    s_cmp_eq_u32 s22, 0
    s_waitcnt lgkmcnt(0)
    s_cselect_b32 s16, s36, s42
    s_cselect_b32 s17, s37, s43
    s_mov_b32 s18, {2048*1024}
    s_mov_b32 s19, 0x00020000
    s_cselect_b32 s4, s38, s44
    s_cselect_b32 s5, s39, s45
    s_mov_b32 s6, {512*3072}
    s_mov_b32 s7, 0x00020000
    """)
    stamp(a, 1)
    a(f"{L('p1l_loop')}:")
    a("s_mov_b32 m0, s33")
    a("s_add_u32 s20, s30, 32768")
    for il in range(4):
        a(f"buffer_load_dwordx4 v{XO+il}, s[16:19], s30 offen offset:{1024*il} lds")
    a("s_add_u32 m0, s33, s34")
    a("s_add_u32 s30, s30, 128")
    for sub in range(3):
        a(f"buffer_load_dwordx4 v{WO}, s[4:7], s31 offen offset:{1024*sub} lds")
    a("s_add_u32 m0, s33, 4096")
    a(f"s_add_u32 s31, s31, {64*3072}")
    for il in range(4):
        a(f"buffer_load_dwordx4 v{XO+il}, s[16:19], s20 offen offset:{1024*il} lds")
    a(f"""
    s_add_u32 s33, s33, {P1_SLOT}
    s_add_u32 s29, s29, 1
    s_cmp_eq_u32 s29, 3
    s_cbranch_scc0 {L('p1l_nowrap')}
    s_mov_b32 s29, 0
    s_sub_u32 s33, s33, {3*P1_SLOT}
    {L('p1l_nowrap')}:
    s_add_u32 s35, s35, 1
    s_cmp_eq_u32 s35, 1
    s_cbranch_scc1 {L('p1l_loop')}
    s_waitcnt vmcnt(11)
    s_barrier
    s_cmp_lt_u32 s35, 8
    s_cbranch_scc1 {L('p1l_loop')}
    s_waitcnt vmcnt(0)
    s_barrier
    """)
    stamp(a, 2)
    srd(a, 12, 8, WS_BYTES)
    QFR = 152
    a(f"""
    s_lshl_b32 s20, s28, 11
    v_lshlrev_b32 v3, 4, v2
    v_add_u32 v4, s20, v3
    v_add_u32 v4, {QX}, v4
    s_barrier                       ; E1
    ds_read_b128 {vr(QFR,4)}, v4
    ds_read_b128 {vr(QFR+4,4)}, v4 offset:1024
    s_branch {L('p2')}
    """)
    XA = 4; WA = 8; FR = 12; ACC = 52
    a(f"{L('p1c')}:")
    a(f"""
    v_and_b32 v3, 31, v2            ; t
    v_lshrrev_b32 v9, 5, v2         ; h
    v_bfe_u32 v10, v3, 1, 3         ; (t>>1)&7
    s_lshl_b32 s30, s27, 13         ; w*64*128
    v_lshlrev_b32 v11, 7, v3
    v_add_u32 v11, s30, v11
    """)
    for ks in range(4):
        a(f"""
        v_add_u32 v1, {2*ks}, v9
        v_xor_b32 v1, v1, v10
        v_lshl_add_u32 v{XA+ks}, v1, 4, v11
        """)
    a(f"""
    v_bfe_u32 v10, v2, 2, 2         ; r
    v_lshl_add_u32 v11, v9, 3, v10
    v_lshlrev_b32 v11, 6, v11
    v_bfe_u32 v1, v2, 4, 1
    v_lshl_add_u32 v11, v1, 5, v11
    v_and_b32 v1, 3, v2
    v_lshl_add_u32 v{WA}, v1, 3, v11
    s_mov_b32 s35, 0
    s_mov_b32 s29, 0
    """)
    for i in range(96):
        a(f"v_mov_b32 v{ACC+i}, 0")
    def reads(ks, st):
        f = FR + 20 * st
        r = []
        for b in range(2):
            r.append(f"ds_read_b128 {vr(f+4*b,4)}, v{XA+ks} offset:{4096*b}")
        for sub in range(3):
            for rho in range(2):
                r.append(f"ds_read_b64_tr_b16 {vr(f+8+4*sub+2*rho,2)}, v{WA} offset:{32768+ks*3072+sub*1024+rho*256}")
        return [r[0]] + r[2:] + [r[1]]
    def mfmas(st):
        f = FR + 20 * st
        m = []
        for b in range(2):
            x = vr(f+4*b, 4)
            m.append(f"v_mfma_f32_32x32x16_bf16 {vr(ACC+16*b,16)}, {vr(f+8,4)}, {x}, {vr(ACC+16*b,16)}")
            m.append(f"v_mfma_f32_32x32x16_bf16 {vr(ACC+32+16*b,16)}, {vr(f+12,4)}, {x}, {vr(ACC+32+16*b,16)}")
            m.append(f"v_mfma_f32_32x32x16_bf16 {vr(ACC+64+16*b,16)}, {x}, {vr(f+16,4)}, {vr(ACC+64+16*b,16)}")
        return m
    stamp(a, 1)
    a("s_barrier")
    stamp(a, 2)
    for r in reads(0, 0): a(r)
    a(f"{L('p1c_loop')}:")
    for ks in range(4):
        st = ks & 1
        m = mfmas(st)
        a("s_waitcnt lgkmcnt(0)")
        if ks < 3:
            rd = reads(ks + 1, st ^ 1)
            a(m[0]); a(rd[0]); a(rd[1])
            a(m[1]); a(rd[2]); a(rd[3])
            a(m[2]); a(rd[4]); a(rd[5])
            a(m[3]); a(rd[6]); a(rd[7])
            a(m[4])
            if ks == 2:
                a(f"""
                s_add_u32 s29, s29, 1
                s_cmp_eq_u32 s29, 3
                s_cselect_b32 s29, 0, s29
                s_mov_b32 s31, {P1_SLOT}
                s_cselect_b32 s31, {(-2*P1_SLOT) & 0xffffffff:#x}, s31
                s_add_u32 s35, s35, 1
                s_cmp_eq_u32 s35, 8
                """)
            a(m[5])
        else:
            a(m[0])
            for i in range(5):
                a(f"v_add_u32 v{XA+i}, s31, v{XA+i}")
            a(m[1])
            a(f"s_cbranch_scc1 {L('p1c_tail')}")
            a("s_barrier")
            rd = reads(0, 0)
            a(rd[0]); a(rd[1]); a(rd[2])
            a(m[2]); a(rd[3]); a(rd[4]); a(rd[5])
            a(m[3]); a(rd[6]); a(rd[7])
            a(m[4]); a(m[5])
            a(f"s_branch {L('p1c_loop')}")
            a(f"{L('p1c_tail')}:")
            a(m[2]); a(m[4]); a(m[5]); a(m[3])
    stamp(a, 3)
    srd(a, 12, 8, WS_BYTES)
    a(f"""
    s_lshl_b32 s30, s26, 7
    s_lshl_b32 s31, s24, 3
    s_add_u32 s30, s30, s31
    s_lshl_b32 s31, s27, 1
    s_add_u32 s30, s30, s31
    s_lshl_b32 s30, s30, 10
    s_add_u32 s31, s30, 0x10000     ; head1
    s_add_u32 s34, s30, {VF}
    s_mov_b32 s35, {f32bits(CSCALE):#x}
    v_and_b32 v3, 31, v2            ; t
    v_and_b32 v5, 0x13, v3
    v_bfe_u32 v6, v3, 2, 1
    v_lshl_or_b32 v5, v6, 3, v5
    v_bfe_u32 v6, v3, 3, 1
    v_lshl_or_b32 v5, v6, 2, v5     ; swap23(t)
    v_lshlrev_b32 v5, 4, v5
    v_lshl_add_u32 v5, v9, 9, v5
    s_lshl_b32 s20, s27, 11
    v_add_u32 v7, s20, v5
    v_and_b32 v6, 15, v2
    v_lshlrev_b32 v6, 4, v6
    v_lshl_add_u32 v6, v9, 8, v6    ; d*16 + h*256
    v_bfe_u32 v1, v2, 4, 1
    v_mul_u32_u24 v8, {8*VSTR}, v1
    v_add_u32 v8, v8, v6
    s_mul_i32 s21, s27, {2*VSTR}
    s_add_u32 s21, s21, 16384
    v_add_u32 v8, s21, v8
    v_lshl_add_u32 v6, v1, 16, v6
    v_lshlrev_b32 v3, 4, v2         ; lane*16
    v_add_u32 v4, s20, v3
    v_add_u32 v4, {QX}, v4
    """)
    T = FR
    tc = 0
    for sub in (1, 2):
        for b in range(2):
            base = ACC + 32 * sub + 16 * b
            for half in range(2):
                t = T + 4 * tc; tc += 1
                for i in range(4):
                    a(f"v_cvt_pk_bf16_f32 v{t+i}, v{base+8*half+2*i}, v{base+8*half+2*i+1}")
                if sub == 1:
                    a(f"buffer_store_dwordx4 {vr(t,4)}, v5, s[12:15], s{30+half} offen offset:{1024*b} sc1")
                    a(f"ds_write_b128 v7, {vr(t,4)} offset:{8192*half+1024*b}")
                else:
                    a(f"buffer_store_dwordx4 {vr(t,4)}, v6, s[12:15], s34 offen offset:{1024*b+512*half} sc1")
                    a(f"ds_write_b128 v8, {vr(t,4)} offset:{VSTR*b+512*half}")
    for b in range(2):
        base = ACC + 16 * b
        for i in range(16):
            a(f"v_mul_f32 v{base+i}, s35, v{base+i}")
        t = T + 4 * tc; tc += 1
        for i in range(4):
            a(f"v_cvt_pk_bf16_f32 v{t+i}, v{base+8+2*i}, v{base+8+2*i+1}")
        a(f"ds_write_b128 v4, {vr(t,4)} offset:{1024*b}")
        for i in range(4):
            a(f"v_cvt_pk_bf16_f32 v{QFR+4*b+i}, v{base+2*i}, v{base+2*i+1}")
    a(f"""
    s_waitcnt lgkmcnt(0)
    s_barrier                       ; E1
    """)
    stamp(a, 4)
    a(f"""
    v_mov_b32 v1, {TOK}
    ds_read_b64 v[10:11], v1
    s_lshl_b32 s20, s26, 3
    s_add_u32 s20, s20, s24
    s_lshl_b32 s20, s20, 7
    s_lshl_b32 s21, s27, 3
    s_add_u32 s20, s20, s21
    s_add_u32 s20, s20, {KVFLAG}
    v_mov_b32 v1, 0
    s_waitcnt vmcnt(0) lgkmcnt(0)
    s_mov_b64 exec, 1
    buffer_store_dwordx2 v[10:11], v1, s[12:15], s20 offen sc1
    s_mov_b64 exec, -1
    """)
    KA, V0A, V1A, IDX = 4, 5, 6, 7
    KFR, V0F, V1F, SS, TMP, CC, OO = 8, 16, 24, 32, 64, 80, 112
    NV = 160
    NQ = 2
    a(f"{L('p2')}:")
    stamp(a, 5)
    a(f"""
    s_lshr_b32 s28, s27, 2          ; hh
    s_and_b32 s29, s27, 3           ; pair
    v_mov_b32 v1, {TOK}
    ds_read_b64 v[{TMP+12}:{TMP+13}], v1
    s_lshl_b32 s20, s28, 13
    v_add_u32 v{KA}, s20, v3
    ds_read_b128 {vr(KFR,4)}, v{KA}
    ds_read_b128 {vr(KFR+4,4)}, v{KA} offset:1024
    v_and_b32 v{TMP+8}, 15, v2
    v_lshlrev_b32 v{TMP+8}, 4, v{TMP+8}
    v_lshrrev_b32 v1, 5, v2
    v_lshl_add_u32 v{TMP+8}, v1, 8, v{TMP+8}     ; d*16 + ha*256
    v_and_b32 v{TMP+10}, 11, v2
    v_cmp_eq_u32 vcc, 0, v{TMP+10}
    v_mov_b32 v1, 1024
    v_mov_b32 v{TMP+11}, 1040
    v_cndmask_b32 v1, v{TMP+11}, v1, vcc
    v_and_b32 v{TMP+10}, 16, v2
    v_cmp_eq_u32 vcc, 0, v{TMP+10}
    v_add_u32 v{TMP+9}, 512, v{TMP+8}
    s_mul_i32 s20, s28, {8*VSTR}
    s_add_u32 s20, s20, 16384
    v_cndmask_b32 v{V0A}, v1, v{TMP+8}, vcc
    v_cndmask_b32 v{V1A}, v1, v{TMP+9}, vcc
    v_add_u32 v{V0A}, s20, v{V0A}
    v_add_u32 v{V1A}, s20, v{V1A}
    v_mov_b32 v{IDX}, 0xdddddddd
    ds_read_b128 {vr(V0F,4)}, v{V0A}
    ds_read_b128 {vr(V1F,4)}, v{V1A}
    s_waitcnt lgkmcnt(2)
    """)
    for q in range(NQ):
        a(f"v_mfma_f32_32x32x16_bf16 {vr(CC+16*q,16)}, {vr(KFR,4)}, {vr(QFR+4*q,4)}, 0")
    a(f"v_readfirstlane_b32 s52, v{TMP+12}")
    a(f"v_readfirstlane_b32 s53, v{TMP+13}")
    for i in range(16 * NQ):
        a(f"v_mov_b32 v{OO+i}, 0")
    def maxtree(dst, S, init):
        if init:
            a(f"v_max3_f32 v{dst}, v{S}, v{S+1}, v{S+2}")
            rest = list(range(S+3, S+16))
        else:
            rest = list(range(S, S+16))
        while len(rest) >= 2:
            a(f"v_max3_f32 v{dst}, v{dst}, v{rest[0]}, v{rest[1]}"); rest = rest[2:]
        if rest:
            a(f"v_max_f32 v{dst}, v{dst}, v{rest[0]}")
    def setc(first_qk):
        for q in range(NQ):
            a(f"v_mov_b32 v{TMP+NQ+q}, v{TMP+q}")
        a("s_nop 1")
        for q in range(NQ):
            a(f"v_permlane32_swap_b32 v{TMP+q}, v{TMP+NQ+q}")
        a("s_nop 1")
        for q in range(NQ):
            a(f"v_max_f32 v{TMP+q}, v{TMP+q}, v{TMP+NQ+q}")
        for q in range(NQ):
            for i in range(16):
                a(f"v_mul_f32 v{CC+16*q+i}, -1.0, v{TMP+q}")
            if q == 0 and first_qk:
                a(f"""
                s_nop 1
                v_mfma_f32_32x32x16_bf16 {vr(SS,16)}, {vr(KFR,4)}, {vr(QFR,4)}, {vr(CC,16)}
                """)
    for q in range(NQ):
        maxtree(TMP+q, CC+16*q, True)
    setc(True)
    for i in range(8):
        a(f"v_mov_b32 v{SS+16+8+i}, 0")
    for i in range(4):
        a(f"v_mov_b32 v{V1F+4+i}, 0")
    a("s_mov_b32 s41, 0             ; chunk")
    a("s_mov_b32 s40, 0             ; slot")
    if OPT["PRIO"]: a("s_setprio 2")
    stamp(a, 6)
    a(".p2align 6")
    a(f"{L('p2_loop')}:")
    for t in range(8):
        for q in range(NQ):
            u = t * NQ + q
            S = SS + 16 * (u & 1)
            Sn = SS + 16 * ((u + 1) & 1)
            ex = [f"v_exp_f32 v{S+i}, v{S+i}" for i in range(16)]
            pt, pq = (t, q - 1) if q > 0 else (t - 1, NQ - 1)
            pv1 = f"v_smfmac_f32_32x32x32_bf16 {vr(OO+16*pq,16)}, {vr(V1F+4*(pt&1),4)}, {vr(Sn+8,8)}, v{IDX}"
            nt, nq = (t, q + 1) if q < NQ - 1 else (t + 1, 0)
            qk = f"v_mfma_f32_32x32x16_bf16 {vr(Sn,16)}, {vr(KFR+4*(nt&1),4)}, {vr(QFR+4*nq,4)}, {vr(CC+16*nq,16)}"
            pv0 = f"v_smfmac_f32_32x32x32_bf16 {vr(OO+16*q,16)}, {vr(V0F+4*(t&1),4)}, {vr(S,8)}, v{IDX}"
            if OPT["PRIO"]:
                if (t, q) == (3, 0): a("s_setprio 1")
                if (t, q) == (5, 1): a("s_setprio 0")
            if (t, q) == (4, 1):
                a(f"""
                s_add_u32 s40, s40, 1
                s_cmp_eq_u32 s40, 3
                s_cselect_b32 s40, 0, s40
                s_mov_b32 s42, {P2_SLOT}
                s_cselect_b32 s42, {(-2*P2_SLOT) & 0xffffffff:#x}, s42
                """)
            if q == 0:
                a("s_waitcnt lgkmcnt(0)")
            a(ex[0]); a(ex[1]); a(pv1); a(ex[2]); a(ex[3]); a(ex[4]); a(qk)
            for i in range(5, 10): a(ex[i])
            a(pv0)
            if q == 0:
                if t == 6:
                    a("s_barrier")
                    if OPT["PRIO"]: a("s_setprio 2")
                    a(f"v_add_u32 v{KA}, s42, v{KA}")
                if t == 7:
                    a(f"v_add_u32 v{V0A}, s42, v{V0A}")
                    a(f"v_add_u32 v{V1A}, s42, v{V1A}")
                a(ex[10])
                a(f"ds_read_b128 {vr(V0F+4*((t+1)&1),4)}, v{V0A} offset:{VSTR*((t+1)%8)}")
                a(ex[11]); a(ex[12])
                a(f"ds_read_b128 {vr(KFR+4*(t&1),4)}, v{KA} offset:{1024*((t+2)%8)}")
                a(ex[13]); a(ex[14])
                a(f"ds_read_b128 {vr(V1F+4*((t+1)&1),4)}, v{V1A} offset:{VSTR*((t+1)%8)}")
                a(ex[15])
            else:
                if t == 7:
                    a("s_add_u32 s41, s41, 1")
                    a("s_cmp_lt_u32 s41, 8")
                for i in range(10, 16): a(ex[i])
    a(f"s_cbranch_scc1 {L('p2_loop')}")
    stamp(a, 7)
    a(f"""
    s_nop 1
    v_smfmac_f32_32x32x32_bf16 {vr(OO+16,16)}, {vr(V1F+4,4)}, {vr(SS+16+8,8)}, v{IDX}
    s_lshl_b32 s20, s26, 1
    s_add_u32 s20, s20, s28         ; bh
    s_lshl_b32 s23, s24, 3
    s_lshl_b32 s21, s29, 1
    s_add_u32 s23, s23, s21         ; qt0
    s_mov_b32 s42, 0x5f800000       ; 2^64
    s_mov_b64 s[44:45], 0
    s_waitcnt lgkmcnt(0)
    s_nop 7
    """)
    for q in range(NQ):
        O = OO + 16 * q
        a(f"v_mul_f32 v{TMP}, 0, v{O}")
        for i in range(1, 8):
            a(f"v_fmac_f32 v{TMP}, 0, v{O+i}")
        a(f"v_add_f32 v{TMP}, v{TMP}, v{O+8}")
        a(f"v_cmp_nlt_f32 s[46:47], v{TMP}, s42")
        a("s_nop 3")
        a("s_or_b64 s[44:45], s[44:45], s[46:47]")
    if OPT["FORCEFB"]:
        a(f"s_branch {L('fallback')}")
    a(f"""
    s_cbranch_scc1 {L('fallback')}
    {L('final')}:
    """)
    for q in range(NQ):
        a(f"v_rcp_f32 v{TMP+q}, v{OO+16*q+8}")
    a(f"""
    s_lshl_b32 s30, s22, 6
    s_add_u32 s30, s30, s23         ; b*64+qt0
    s_lshl_b32 s30, s30, 5
    s_and_b32 s31, s20, 31
    s_add_u32 s30, s30, s31         ; *32 + head
    s_lshl_b32 s30, s30, 10
    s_add_u32 s30, s30, {OF}
    """)
    for q in range(NQ):
        O = OO + 16 * q
        for i in range(8):
            a(f"v_mul_f32 v{O+i}, v{O+i}, v{TMP+q}")
        for i in range(4):
            a(f"v_cvt_pk_bf16_f32 v{SS+4*q+i}, v{O+2*i}, v{O+2*i+1}")
        a(f"buffer_store_dwordx4 {vr(SS+4*q,4)}, v3, s[12:15], s30 offen sc1")
        a("s_add_u32 s30, s30, 32768")
    OFR, WFR, ACC3 = 16, 80, 96
    a(f"""
    s_lshl_b32 s20, s26, 3
    s_add_u32 s20, s20, s24
    s_lshl_b32 s20, s20, 7
    s_lshl_b32 s21, s27, 3
    s_add_u32 s20, s20, s21
    s_add_u32 s20, s20, {OFLAG}
    v_mov_b32 v10, s52
    v_mov_b32 v11, s53
    v_mov_b32 v1, 0
    s_and_b32 s30, s25, 1
    s_lshl_b32 s30, s30, 2
    s_add_u32 s30, s30, s29         ; qtl
    v_and_b32 v4, 15, v2
    v_lshrrev_b32 v5, 1, v4
    v_lshlrev_b32 v5, 10, v5        ; (i>>1)*8 WGs*128
    v_and_b32 v4, 1, v4
    v_lshl_add_u32 v5, v4, 5, v5    ; + (i&1)*32
    s_lshl_b32 s31, s22, 4
    s_lshl_b32 s32, s28, 3
    s_add_u32 s31, s31, s32         ; b*16 + 8kh
    s_lshl_b32 s31, s31, 3
    s_add_u32 s31, s31, s24
    s_lshl_b32 s31, s31, 7
    s_lshr_b32 s32, s30, 1
    s_lshl_b32 s32, s32, 3
    s_add_u32 s31, s31, s32
    s_add_u32 s31, s31, {OFLAG}
    ; O source
    s_lshl_b32 s33, s24, 3
    s_add_u32 s33, s33, s30         ; qt
    s_lshl_b32 s34, s22, 6
    s_add_u32 s34, s34, s33
    s_lshl_b32 s34, s34, 15
    s_lshl_b32 s32, s28, 14
    s_add_u32 s34, s34, s32
    s_add_u32 s34, s34, {OF}
    v_bfe_u32 v6, v2, 2, 2          ; r
    v_lshrrev_b32 v7, 5, v2         ; h
    v_lshl_add_u32 v8, v7, 2, v6
    v_lshlrev_b32 v8, 7, v8
    v_and_b32 v9, 1, v2
    v_lshlrev_b32 v9, 1, v9
    v_bfe_u32 v12, v2, 4, 1
    v_add_u32 v9, v9, v12
    v_and_b32 v12, 2, v6
    v_lshl_add_u32 v9, v12, 1, v9
    v_bfe_u32 v12, v2, 1, 1
    v_lshl_add_u32 v8, v12, 3, v8
    v_lshl_add_u32 v12, v9, 4, v8
    s_lshl_b32 s32, s28, 15
    s_add_u32 s32, s32, {WO_LDS}
    v_add_u32 v12, s32, v12         ; beta 0
    v_xor_b32 v13, 64, v12          ; beta 1
    s_waitcnt vmcnt(0)
    s_mov_b64 exec, 1
    buffer_store_dwordx2 v[10:11], v1, s[12:15], s20 offen sc1
    s_mov_b64 exec, -1
    """)
    if OPT["PRIO"]: a("s_setprio 0")
    stamp(a, 8)
    for i in range(32):
        a(f"v_mov_b32 v{ACC3+i}, 0")
    a(f"""
    s_barrier                       ; E2
    s_mov_b32 s35, 0
    {L('p3_poll')}:
    buffer_load_dwordx2 v[14:15], v5, s[12:15], s31 offen sc1
    s_add_u32 s35, s35, 1
    s_waitcnt vmcnt(0)
    v_cmp_ne_u64 vcc, s[52:53], v[14:15]
    s_cmp_gt_u32 s35, {SPIN_MAX}
    s_cbranch_scc1 {L('p3_go')}
    s_cbranch_vccz {L('p3_go')}
    s_sleep 1
    s_branch {L('p3_poll')}
    {L('p3_go')}:
    """)
    stamp(a, 9)
    for h in range(16):
        a(f"buffer_load_dwordx4 {vr(OFR+4*h,4)}, v3, s[12:15], s34 offen offset:{1024*(h%4)} sc1")
        if h % 4 == 3 and h < 15: a("s_add_u32 s34, s34, 4096")
    def reads3(h, st):
        f = WFR + 8 * st
        return [f"ds_read_b64_tr_b16 {vr(f+4*b+2*rho,2)}, v{12+b} offset:{h*2048+rho*1024}" for b in range(2) for rho in range(2)]
    for r in reads3(0, 0): a(r)
    for h in range(16):
        st = h & 1
        if h < 15:
            for r in reads3(h + 1, st ^ 1): a(r)
            a(f"s_waitcnt vmcnt({15-h}) lgkmcnt(4)")
        else:
            a("s_waitcnt vmcnt(0) lgkmcnt(0)")
        for b in range(2):
            a(f"v_mfma_f32_32x32x16_bf16 {vr(ACC3+16*b,16)}, {vr(WFR+8*st+4*b,4)}, {vr(OFR+4*h,4)}, {vr(ACC3+16*b,16)}")
    stamp(a, 10)
    a(f"""
    s_lshl_b32 s30, s27, 12
    s_xor_b32 s31, s30, 0x4000
    v_add_u32 v4, s31, v3
    v_add_u32 v5, s30, v3
    s_mov_b32 s16, s48
    s_mov_b32 s17, s49
    s_mov_b32 s18, {2048*2048}
    s_mov_b32 s19, 0x00020000
    v_and_b32 v6, 31, v2
    v_lshlrev_b32 v6, 11, v6
    v_lshl_add_u32 v6, v7, 5, v6    ; t*2048 + h*32
    s_lshl_b32 s33, s33, 16         ; qt*32*2048
    s_lshl_b32 s32, s22, 10
    s_add_u32 s33, s33, s32
    s_lshr_b32 s32, s25, 1
    s_lshl_b32 s32, s32, 7
    s_add_u32 s33, s33, s32
    s_lshl_b32 s32, s28, 6
    s_add_u32 s33, s33, s32         ; + beta*64
    s_cmp_eq_u32 s28, 0
    s_cbranch_scc1 {L('p3_k0')}
    """)
    def reduce(keep, send):
        for i in range(4):
            a(f"ds_write_b128 v4, {vr(send+4*i,4)} offset:{1024*i}")
        a("s_waitcnt lgkmcnt(0)")
        a("s_barrier")
        for i in range(4):
            a(f"ds_read_b128 {vr(OFR+4*i,4)}, v5 offset:{1024*i}")
        for i in range(4):
            a(f"s_waitcnt lgkmcnt({3-i})")
            for j in range(4):
                a(f"v_add_f32 v{OFR+4*i+j}, v{OFR+4*i+j}, v{keep+4*i+j}")
    reduce(ACC3 + 16, ACC3)
    a(f"s_branch {L('p3_out')}")
    a(f"{L('p3_k0')}:")
    reduce(ACC3, ACC3 + 16)
    a(f"{L('p3_out')}:")
    for i in range(8):
        a(f"v_cvt_pk_bf16_f32 v{WFR+i}, v{OFR+2*i}, v{OFR+2*i+1}")
    a(f"buffer_store_dwordx4 {vr(WFR,4)}, v6, s[16:19], s33 offen")
    a(f"buffer_store_dwordx4 {vr(WFR+4,4)}, v6, s[16:19], s33 offen offset:16")
    stamp(a, 11)
    if DIAG: a("s_waitcnt vmcnt(0)")
    stamp(a, 12); stamp_real(a, 15)
    diag_store(a)
    a(f"{L('end')}:")
    a("s_endpgm")

    a(f"{L('helper')}:")
    a(f"""
    s_setprio 3
    s_memrealtime s[54:55]
    v_lshlrev_b32 v3, 4, v2         ; lane*16
    v_mov_b32 v1, 0
    v_mov_b32 v6, 0
    v_mov_b32 v7, 0
    s_waitcnt lgkmcnt(0)
    s_or_b32 s54, s54, 1
    """)
    srd(a, 12, 8, WS_BYTES)
    srd(a, 16, 50, 256)
    a(f"""
    v_mov_b32 v4, s54
    v_mov_b32 v5, s55
    s_mov_b64 exec, 1
    buffer_atomic_cmpswap_x2 v[4:7], v1, s[16:19], 0 offen sc0
    s_mov_b64 exec, -1
    v_mov_b32 v8, 0x3f803f80
    v_mov_b32 v9, 0x3f803f80
    v_mov_b32 v10, 0x3f803f80
    v_mov_b32 v11, 0x3f803f80
    v_mov_b32 v12, 0
    v_mov_b32 v13, 0
    v_mov_b32 v14, 0
    v_mov_b32 v15, 0
    v_and_b32 v16, 15, v2
    v_mul_u32_u24 v16, {VSTR}, v16
    v_lshrrev_b32 v17, 4, v2
    v_mul_u32_u24 v17, {P2_SLOT}, v17
    v_add3_u32 v16, v16, v17, v1
    v_add_u32 v16, {16384+1024}, v16
    s_cmp_eq_u32 s22, 0
    s_cselect_b32 s4, s40, s46      ; wo
    s_cselect_b32 s5, s41, s47
    s_mov_b32 s6, {512*1024}
    s_mov_b32 s7, 0x00020000
    """)
    for i in range(8):
        a("s_barrier")
    a(f"""
    s_mov_b64 exec, 0xffff
    ds_write_b128 v16, v[8:11]
    ds_write_b128 v16, v[12:15] offset:16
    s_waitcnt vmcnt(0)
    v_readfirstlane_b32 s52, v4
    v_readfirstlane_b32 s53, v5
    s_nop 3
    s_or_b32 s20, s52, s53
    s_cmp_eq_u32 s20, 0
    s_cselect_b32 s52, s54, s52
    s_cselect_b32 s53, s55, s53
    v_mov_b32 v4, s52
    v_mov_b32 v5, s53
    v_mov_b32 v17, {TOK}
    s_mov_b64 exec, 1
    ds_write_b64 v17, v[4:5]
    s_waitcnt lgkmcnt(0)
    s_barrier                       ; E1
    s_mov_b32 s20, 0xffff0000
    s_mov_b32 s21, 0x0000ffff
    s_mov_b64 exec, s[20:21]
    ds_write_b128 v16, v[8:11]
    ds_write_b128 v16, v[12:15] offset:16
    s_mov_b64 exec, -1
    v_and_b32 v18, 3, v2
    v_lshlrev_b32 v18, 3, v18
    s_mov_b32 s41, 1                ; chunk
    s_mov_b32 s40, {P2_SLOT}
    """)
    stamp(a, 4)
    a(f"""
    {L('h_loop')}:
    s_add_u32 s20, s24, s41
    s_and_b32 s20, s20, 7
    s_lshl_b32 s21, s26, 3
    s_add_u32 s21, s21, s20
    s_lshl_b32 s21, s21, 7
    s_add_u32 s21, s21, {KVFLAG}
    s_mov_b32 s35, 0
    {L('h_poll')}:
    buffer_load_dwordx2 v[14:15], v18, s[12:15], s21 offen sc1
    s_add_u32 s35, s35, 1
    s_waitcnt vmcnt(0)
    v_cmp_ne_u64 vcc, s[52:53], v[14:15]
    s_cmp_gt_u32 s35, {SPIN_MAX}
    s_cbranch_scc1 {L('h_go')}
    s_cbranch_vccz {L('h_go')}
    s_sleep 1
    s_branch {L('h_poll')}
    {L('h_go')}:
    s_lshl_b32 s30, s26, 17         ; (b*16+g2)*128KB
    s_lshl_b32 s31, s20, 13
    s_add_u32 s30, s30, s31
    s_mov_b32 s33, s40              ; K dst
    s_add_u32 s34, s40, 16384       ; V dst
    s_mov_b32 s32, 0
    {L('h_grp')}:
    s_mov_b32 m0, s33
    s_add_u32 s31, s30, {VF}
    """)
    for i in range(4):
        a(f"buffer_load_dwordx4 v3, s[12:15], s30 offen offset:{1024*i} sc1 lds")
    for i in range(4):
        a(f"s_add_u32 m0, s34, {(VSTR-1024)*i}")
        a("s_nop 0")
        a(f"buffer_load_dwordx4 v3, s[12:15], s31 offen offset:{1024*i} sc1 lds")
    a(f"""
    s_add_u32 s33, s33, 4096
    s_add_u32 s34, s34, {4*VSTR}
    s_add_u32 s32, s32, 1
    s_cmp_eq_u32 s32, 2
    s_mov_b32 s31, 4096
    s_cselect_b32 s31, {65536-4096}, s31
    s_add_u32 s30, s30, s31
    s_cmp_lt_u32 s32, 4
    s_cbranch_scc1 {L('h_grp')}
    s_add_u32 s40, s40, {P2_SLOT}
    s_cmp_eq_u32 s40, {3*P2_SLOT}
    s_cselect_b32 s40, 0, s40
    s_add_u32 s41, s41, 1
    s_waitcnt vmcnt(0) lgkmcnt(0)
    """)
    if DIAG:
        a(f"s_cmp_eq_u32 s41, 2\ns_cbranch_scc0 {L('h_nostamp')}")
        stamp(a, 5)
        a(f"{L('h_nostamp')}:")
    a(f"""
    s_barrier
    s_cmp_lt_u32 s41, 8
    s_cbranch_scc1 {L('h_loop')}
    v_lshrrev_b32 v4, 3, v2
    v_and_b32 v5, 7, v2
    v_bfe_u32 v6, v2, 4, 1
    v_lshlrev_b32 v6, 2, v6
    v_xor_b32 v5, v5, v6
    v_lshlrev_b32 v5, 4, v5
    v_lshl_add_u32 v5, v4, 10, v5
    v_add_u32 v6, 7168, v5
    v_add_u32 v7, {2*7168}, v5
    v_add_u32 v8, {3*7168}, v5
    s_lshr_b32 s30, s25, 1
    s_lshl_b32 s30, s30, 7
    s_mov_b32 s33, {WO_LDS}
    {L('h_wo')}:
    s_mov_b32 m0, s33
    s_add_u32 s33, s33, 4096
    """)
    for i in range(4):
        a(f"buffer_load_dwordx4 v{5+i}, s[4:7], s30 offen offset:{1024*i} lds")
    a(f"""
    s_add_u32 s30, s30, 32768
    s_waitcnt vmcnt(40)
    s_cmp_lt_u32 s33, {WO_LDS+65536}
    s_cbranch_scc1 {L('h_wo')}
    s_barrier                       ; S_7
    s_waitcnt vmcnt(0)
    """)
    stamp(a, 8)
    a("s_barrier                       ; E2")
    stamp(a, 12); stamp_real(a, 15)
    diag_store(a)
    a("s_endpgm")

    a(f"{L('fallback')}:")
    a(f"""
    s_lshl_b32 s30, s20, 16
    s_mov_b32 s41, 0
    """)
    for q in range(NQ):
        a(f"v_mov_b32 v{TMP+q}, 0xff800000")
    a(f"""
    {L('fb1')}:
    buffer_load_dwordx4 {vr(KFR,4)}, v3, s[12:15], s30 offen sc1
    s_add_u32 s30, s30, 1024
    s_waitcnt vmcnt(0)
    """)
    for q in range(NQ):
        a(f"v_mfma_f32_32x32x16_bf16 {vr(CC+16*q,16)}, {vr(KFR,4)}, {vr(QFR+4*q,4)}, 0")
    a("s_nop 15")
    for q in range(NQ):
        maxtree(TMP+q, CC+16*q, False)
    a(f"""
    s_add_u32 s41, s41, 1
    s_cmp_lt_u32 s41, 64
    s_cbranch_scc1 {L('fb1')}
    """)
    setc(False)
    for i in range(16 * NQ):
        a(f"v_mov_b32 v{OO+i}, 0")
    for i in range(4):
        a(f"v_mov_b32 v{V0F+i}, 0x3f803f80")
        a(f"v_mov_b32 v{V1F+i}, 0x3f803f80")
    a(f"""
    v_and_b32 v{TMP+8}, 15, v2
    v_lshlrev_b32 v{TMP+8}, 4, v{TMP+8}
    v_lshrrev_b32 v1, 5, v2
    v_lshl_add_u32 v{TMP+8}, v1, 8, v{TMP+8}
    s_lshl_b32 s30, s20, 16
    s_mov_b32 s41, 0
    s_mov_b32 s46, 0x0000ffff
    s_mov_b32 s47, 0x0000ffff
    {L('fb2')}:
    s_add_u32 s31, s30, {VF}
    buffer_load_dwordx4 {vr(KFR,4)}, v3, s[12:15], s30 offen sc1
    s_mov_b64 exec, s[46:47]
    buffer_load_dwordx4 {vr(V0F,4)}, v{TMP+8}, s[12:15], s31 offen sc1
    buffer_load_dwordx4 {vr(V1F,4)}, v{TMP+8}, s[12:15], s31 offen offset:512 sc1
    s_mov_b64 exec, -1
    s_add_u32 s30, s30, 1024
    s_waitcnt vmcnt(0)
    """)
    for q in range(NQ):
        a(f"v_mfma_f32_32x32x16_bf16 {vr(SS+16*q,16)}, {vr(KFR,4)}, {vr(QFR+4*q,4)}, {vr(CC+16*q,16)}")
    a("s_nop 15")
    for i in range(32):
        a(f"v_exp_f32 v{SS+i}, v{SS+i}")
    a("s_nop 1")
    for q in range(NQ):
        a(f"v_smfmac_f32_32x32x32_bf16 {vr(OO+16*q,16)}, {vr(V0F,4)}, {vr(SS+16*q,8)}, v{IDX}")
        a(f"v_smfmac_f32_32x32x32_bf16 {vr(OO+16*q,16)}, {vr(V1F,4)}, {vr(SS+16*q+8,8)}, v{IDX}")
    a(f"""
    s_add_u32 s41, s41, 1
    s_cmp_lt_u32 s41, 64
    s_nop 15
    s_cbranch_scc1 {L('fb2')}
    s_branch {L('final')}
    """)
    return n, NV

def main(path):
    a = A()
    n, nv = gen(a)
    head = f"""; Two independent MHA blocks (QKV projection -> softmax attention -> output projection), concatenated.
; @launch grid=(256,1,1) block=(576,1,1) lds={LDS_BYTES}
.amdgcn_target "amdgcn-amd-amdhsa--gfx950"
.text
"""
    tail = f""".section .rodata,"a"
.p2align 6
.amdhsa_kernel {n}
  .amdhsa_next_free_vgpr {nv}
  .amdhsa_next_free_sgpr 102
  .amdhsa_accum_offset {(nv+3)//4*4}
  .amdhsa_group_segment_fixed_size 0
  .amdhsa_kernarg_size 72
  .amdhsa_user_sgpr_count 2
  .amdhsa_user_sgpr_kernarg_segment_ptr 1
  .amdhsa_system_sgpr_workgroup_id_x 1
.end_amdhsa_kernel
"""
    open(path, "w").write(head + a.text() + tail)

if __name__ == "__main__":
    for arg in sys.argv[2:]:
        if arg == "diag": DIAG = True
        else:
            k, v = arg.split("="); OPT[k] = int(v)
    main(sys.argv[1] if len(sys.argv) > 1 else f"cdna_kernels/{NAME}.s")
```

```python
import sys, math, struct

NAME = "concat_heads__softmax_full_mha__softmax_full_mha__prompt"
KF, VF, OF = 0, 4 << 20, 8 << 20
KVFLAG = 12 << 20
OFLAG = KVFLAG + (64 << 10)
WS_BYTES = 13 << 20
CSCALE = 0.25 * math.log2(math.e)
def f32bits(x): return struct.unpack("<I", struct.pack("<f", x))[0]
OPT = dict(PRIO=1, FORCEFB=0)
DIAG = False
DIAG_OFF = 16 << 20

class A:
    def __init__(self): self.l = []
    def __call__(self, s=""):
        for line in s.split("\n"):
            line = line.strip()
            if line: self.l.append(("" if line.endswith(":") or line.startswith(".") else "    ") + line)
    def text(self): return "\n".join(self.l) + "\n"

def vr(b, n): return f"v[{b}:{b+n-1}]"

NSTAMP = 14
def stamp(a, i):
    if DIAG:
        a(f"s_memtime s[{64+2*i}:{65+2*i}]")
        a("s_waitcnt lgkmcnt(0)")
def stamp_real(a, i):
    if DIAG:
        a(f"s_memrealtime s[{64+2*i}:{65+2*i}]")
def diag_store(a):
    if not DIAG: return
    a("s_waitcnt lgkmcnt(0)")
    if OPT.get("DBG", -1) >= 0:
        lab = f".L_dbgskip{len(a.l)}"
        a(f"s_cmp_lg_u32 s2, {OPT['DBG']}\ns_cbranch_scc1 {lab}\ns_cmp_lg_u32 s27, {OPT.get('DBGW', 0)}\ns_cbranch_scc1 {lab}")
        a("s_mov_b32 s16, s50\ns_mov_b32 s17, s51\ns_mov_b32 s18, 256\ns_mov_b32 s19, 0x00020000")
        a("s_mov_b64 exec, 1\nv_mov_b32 v1, 0")
        for i in range(1, 13):
            a(f"s_sub_u32 s96, s{64+2*i}, s64\nv_mov_b32 v4, s96\nbuffer_store_dword v4, v1, s[16:19], 0 offen offset:{4+4*i}\ns_nop 1")
        a(f"s_sub_u32 s96, s{64+30}, s{64+28}\nv_mov_b32 v4, s96\nbuffer_store_dword v4, v1, s[16:19], 0 offen offset:{4*15}\ns_nop 1")
        a(f"{lab}:")
    a(f"s_mul_i32 s96, s2, 9")
    a(f"s_add_u32 s96, s96, s27")
    a("s_lshl_b32 s96, s96, 7")
    a(f"s_add_u32 s96, s96, {DIAG_OFF}")
    a(f"s_mov_b32 s14, {32<<20}")
    a("s_mov_b64 exec, 1")
    a("v_mov_b32 v1, 0")
    for j in range(8):
        for i in range(4):
            a(f"v_mov_b32 v{4+i}, s{64+4*j+i}")
        a(f"buffer_store_dwordx4 v[4:7], v1, s[12:15], s96 offen offset:{16*j}")
        a("s_nop 1")

def srd(a, d, base, nbytes):
    a(f"s_mov_b32 s{d}, s{base}\ns_mov_b32 s{d+1}, s{base+1}\ns_mov_b32 s{d+2}, {nbytes}\ns_mov_b32 s{d+3}, 0x00020000")

P1_SLOT = 45056
QX = 3 * P1_SLOT
TOK = QX + 8192
VSTR = 1056
P2_SLOT = 16384 + 16 * VSTR
WO_LDS = 98304
LDS_BYTES = 163840
SPIN_MAX = 1 << 22

def gen(a):
    n = NAME + "_kernel"
    L = lambda s: f".L_{s}"
    a(f".globl {n}\n.p2align 8\n.type {n},@function\n{n}:")
    a(f"""
    s_load_dwordx16 s[36:51], s[0:1], 0
    s_load_dwordx2 s[8:9], s[0:1], 64
    s_cmp_ge_u32 s2, 256
    s_cbranch_scc1 {L('end')}
    """)
    stamp_real(a, 14); stamp(a, 0)
    a(f"""
    v_lshrrev_b32 v1, 6, v0
    v_and_b32 v2, 63, v0            ; lane
    s_bfe_u32 s22, s2, 0x10002      ; b = (id>>2)&1
    v_readfirstlane_b32 s27, v1     ; wave
    s_and_b32 s25, s2, 3
    s_lshl_b32 s25, s25, 2
    s_lshr_b32 s21, s2, 6
    s_add_u32 s25, s25, s21
    s_bfe_u32 s24, s2, 0x30003
    s_lshl_b32 s26, s22, 4
    s_add_u32 s26, s26, s25         ; b*16+g2
    s_cmp_lt_u32 s27, 4
    s_cbranch_scc1 {L('p1c')}
    s_cmp_eq_u32 s27, 8
    s_cbranch_scc1 {L('helper')}
    """)
    XO = 8; WO = 12
    a(f"""
    s_sub_u32 s28, s27, 4           ; j
    v_lshrrev_b32 v3, 3, v2         ; l>>3
    v_and_b32 v4, 7, v2
    v_lshrrev_b32 v5, 4, v2         ; l>>4
    v_xor_b32 v6, v5, v4
    v_lshlrev_b32 v6, 4, v6
    v_lshl_add_u32 v{XO}, v3, 10, v6
    v_xor_b32 v6, 64, v{XO}
    v_add_u32 v{XO+1}, {7168}, v6
    v_add_u32 v{XO+2}, {2*7168}, v{XO}
    v_add_u32 v{XO+3}, {3*7168}, v6
    v_lshrrev_b32 v3, 2, v2         ; row = l>>2
    v_and_b32 v4, 3, v2
    v_mul_u32_u24 v3, 3072, v3
    v_lshl_add_u32 v{WO}, v4, 4, v3
    s_lshl_b32 s30, s24, 8
    s_lshl_b32 s31, s28, 6
    s_add_u32 s30, s30, s31
    s_lshl_b32 s30, s30, 10         ; x soffset
    s_mul_i32 s31, s28, {16*3072}
    s_lshl_b32 s32, s25, 6
    s_add_u32 s31, s31, s32         ; W soffset
    s_lshl_b32 s33, s28, 13
    s_mul_i32 s34, s28, 3072
    s_add_u32 s34, s34, 32768
    s_sub_u32 s34, s34, s33
    s_mov_b32 s35, 0                ; stage
    s_mov_b32 s29, 0                ; slot
    s_cmp_eq_u32 s22, 0
    s_waitcnt lgkmcnt(0)
    s_cselect_b32 s16, s36, s42
    s_cselect_b32 s17, s37, s43
    s_mov_b32 s18, {2048*1024}
    s_mov_b32 s19, 0x00020000
    s_cselect_b32 s4, s38, s44
    s_cselect_b32 s5, s39, s45
    s_mov_b32 s6, {512*3072}
    s_mov_b32 s7, 0x00020000
    """)
    stamp(a, 1)
    a(f"{L('p1l_loop')}:")
    a("s_mov_b32 m0, s33")
    a("s_add_u32 s20, s30, 32768")
    for il in range(4):
        a(f"buffer_load_dwordx4 v{XO+il}, s[16:19], s30 offen offset:{1024*il} lds")
    a("s_add_u32 m0, s33, s34")
    a("s_add_u32 s30, s30, 128")
    for sub in range(3):
        a(f"buffer_load_dwordx4 v{WO}, s[4:7], s31 offen offset:{1024*sub} lds")
    a("s_add_u32 m0, s33, 4096")
    a(f"s_add_u32 s31, s31, {64*3072}")
    for il in range(4):
        a(f"buffer_load_dwordx4 v{XO+il}, s[16:19], s20 offen offset:{1024*il} lds")
    a(f"""
    s_add_u32 s33, s33, {P1_SLOT}
    s_add_u32 s29, s29, 1
    s_cmp_eq_u32 s29, 3
    s_cbranch_scc0 {L('p1l_nowrap')}
    s_mov_b32 s29, 0
    s_sub_u32 s33, s33, {3*P1_SLOT}
    {L('p1l_nowrap')}:
    s_add_u32 s35, s35, 1
    s_cmp_eq_u32 s35, 1
    s_cbranch_scc1 {L('p1l_loop')}
    s_waitcnt vmcnt(11)
    s_barrier
    s_cmp_lt_u32 s35, 8
    s_cbranch_scc1 {L('p1l_loop')}
    s_waitcnt vmcnt(0)
    s_barrier
    """)
    stamp(a, 2)
    srd(a, 12, 8, WS_BYTES)
    QFR = 152
    a(f"""
    s_lshl_b32 s20, s28, 11
    v_lshlrev_b32 v3, 4, v2
    v_add_u32 v4, s20, v3
    v_add_u32 v4, {QX}, v4
    s_barrier                       ; E1
    ds_read_b128 {vr(QFR,4)}, v4
    ds_read_b128 {vr(QFR+4,4)}, v4 offset:1024
    s_branch {L('p2')}
    """)
    XA = 4; WA = 8; FR = 12; ACC = 52
    a(f"{L('p1c')}:")
    a(f"""
    v_and_b32 v3, 31, v2            ; t
    v_lshrrev_b32 v9, 5, v2         ; h
    v_bfe_u32 v10, v3, 1, 3         ; (t>>1)&7
    s_lshl_b32 s30, s27, 13         ; w*64*128
    v_lshlrev_b32 v11, 7, v3
    v_add_u32 v11, s30, v11
    """)
    for ks in range(4):
        a(f"""
        v_add_u32 v1, {2*ks}, v9
        v_xor_b32 v1, v1, v10
        v_lshl_add_u32 v{XA+ks}, v1, 4, v11
        """)
    a(f"""
    v_bfe_u32 v10, v2, 2, 2         ; r
    v_lshl_add_u32 v11, v9, 3, v10
    v_lshlrev_b32 v11, 6, v11
    v_bfe_u32 v1, v2, 4, 1
    v_lshl_add_u32 v11, v1, 5, v11
    v_and_b32 v1, 3, v2
    v_lshl_add_u32 v{WA}, v1, 3, v11
    s_mov_b32 s35, 0
    s_mov_b32 s29, 0
    """)
    for i in range(96):
        a(f"v_mov_b32 v{ACC+i}, 0")
    def reads(ks, st):
        f = FR + 20 * st
        r = []
        for b in range(2):
            r.append(f"ds_read_b128 {vr(f+4*b,4)}, v{XA+ks} offset:{4096*b}")
        for sub in range(3):
            for rho in range(2):
                r.append(f"ds_read_b64_tr_b16 {vr(f+8+4*sub+2*rho,2)}, v{WA} offset:{32768+ks*3072+sub*1024+rho*256}")
        return [r[0]] + r[2:] + [r[1]]
    def mfmas(st):
        f = FR + 20 * st
        m = []
        for b in range(2):
            x = vr(f+4*b, 4)
            m.append(f"v_mfma_f32_32x32x16_bf16 {vr(ACC+16*b,16)}, {vr(f+8,4)}, {x}, {vr(ACC+16*b,16)}")
            m.append(f"v_mfma_f32_32x32x16_bf16 {vr(ACC+32+16*b,16)}, {vr(f+12,4)}, {x}, {vr(ACC+32+16*b,16)}")
            m.append(f"v_mfma_f32_32x32x16_bf16 {vr(ACC+64+16*b,16)}, {x}, {vr(f+16,4)}, {vr(ACC+64+16*b,16)}")
        return m
    stamp(a, 1)
    a("s_barrier")
    stamp(a, 2)
    for r in reads(0, 0): a(r)
    a(f"{L('p1c_loop')}:")
    for ks in range(4):
        st = ks & 1
        m = mfmas(st)
        a("s_waitcnt lgkmcnt(0)")
        if ks < 3:
            rd = reads(ks + 1, st ^ 1)
            a(m[0]); a(rd[0]); a(rd[1])
            a(m[1]); a(rd[2]); a(rd[3])
            a(m[2]); a(rd[4]); a(rd[5])
            a(m[3]); a(rd[6]); a(rd[7])
            a(m[4])
            if ks == 2:
                a(f"""
                s_add_u32 s29, s29, 1
                s_cmp_eq_u32 s29, 3
                s_cselect_b32 s29, 0, s29
                s_mov_b32 s31, {P1_SLOT}
                s_cselect_b32 s31, {(-2*P1_SLOT) & 0xffffffff:#x}, s31
                s_add_u32 s35, s35, 1
                s_cmp_eq_u32 s35, 8
                """)
            a(m[5])
        else:
            a(m[0])
            for i in range(5):
                a(f"v_add_u32 v{XA+i}, s31, v{XA+i}")
            a(m[1])
            a(f"s_cbranch_scc1 {L('p1c_tail')}")
            a("s_barrier")
            rd = reads(0, 0)
            a(rd[0]); a(rd[1]); a(rd[2])
            a(m[2]); a(rd[3]); a(rd[4]); a(rd[5])
            a(m[3]); a(rd[6]); a(rd[7])
            a(m[4]); a(m[5])
            a(f"s_branch {L('p1c_loop')}")
            a(f"{L('p1c_tail')}:")
            a(m[2]); a(m[4]); a(m[5]); a(m[3])
    stamp(a, 3)
    srd(a, 12, 8, WS_BYTES)
    a(f"""
    s_lshl_b32 s30, s26, 7
    s_lshl_b32 s31, s24, 3
    s_add_u32 s30, s30, s31
    s_lshl_b32 s31, s27, 1
    s_add_u32 s30, s30, s31
    s_lshl_b32 s30, s30, 10
    s_add_u32 s31, s30, 0x10000     ; head1
    s_add_u32 s34, s30, {VF}
    s_mov_b32 s35, {f32bits(CSCALE):#x}
    v_and_b32 v3, 31, v2            ; t
    v_and_b32 v5, 0x13, v3
    v_bfe_u32 v6, v3, 2, 1
    v_lshl_or_b32 v5, v6, 3, v5
    v_bfe_u32 v6, v3, 3, 1
    v_lshl_or_b32 v5, v6, 2, v5     ; swap23(t)
    v_lshlrev_b32 v5, 4, v5
    v_lshl_add_u32 v5, v9, 9, v5
    s_lshl_b32 s20, s27, 11
    v_add_u32 v7, s20, v5
    v_and_b32 v6, 15, v2
    v_lshlrev_b32 v6, 4, v6
    v_lshl_add_u32 v6, v9, 8, v6    ; d*16 + h*256
    v_bfe_u32 v1, v2, 4, 1
    v_mul_u32_u24 v8, {8*VSTR}, v1
    v_add_u32 v8, v8, v6
    s_mul_i32 s21, s27, {2*VSTR}
    s_add_u32 s21, s21, 16384
    v_add_u32 v8, s21, v8
    v_lshl_add_u32 v6, v1, 16, v6
    v_lshlrev_b32 v3, 4, v2         ; lane*16
    v_add_u32 v4, s20, v3
    v_add_u32 v4, {QX}, v4
    """)
    T = FR
    tc = 0
    for sub in (1, 2):
        for b in range(2):
            base = ACC + 32 * sub + 16 * b
            for half in range(2):
                t = T + 4 * tc; tc += 1
                for i in range(4):
                    a(f"v_cvt_pk_bf16_f32 v{t+i}, v{base+8*half+2*i}, v{base+8*half+2*i+1}")
                if sub == 1:
                    a(f"buffer_store_dwordx4 {vr(t,4)}, v5, s[12:15], s{30+half} offen offset:{1024*b} sc1")
                    a(f"ds_write_b128 v7, {vr(t,4)} offset:{8192*half+1024*b}")
                else:
                    a(f"buffer_store_dwordx4 {vr(t,4)}, v6, s[12:15], s34 offen offset:{1024*b+512*half} sc1")
                    a(f"ds_write_b128 v8, {vr(t,4)} offset:{VSTR*b+512*half}")
    for b in range(2):
        base = ACC + 16 * b
        for i in range(16):
            a(f"v_mul_f32 v{base+i}, s35, v{base+i}")
        t = T + 4 * tc; tc += 1
        for i in range(4):
            a(f"v_cvt_pk_bf16_f32 v{t+i}, v{base+8+2*i}, v{base+8+2*i+1}")
        a(f"ds_write_b128 v4, {vr(t,4)} offset:{1024*b}")
        for i in range(4):
            a(f"v_cvt_pk_bf16_f32 v{QFR+4*b+i}, v{base+2*i}, v{base+2*i+1}")
    a(f"""
    s_waitcnt lgkmcnt(0)
    s_barrier                       ; E1
    """)
    stamp(a, 4)
    a(f"""
    v_mov_b32 v1, {TOK}
    ds_read_b64 v[10:11], v1
    s_lshl_b32 s20, s26, 3
    s_add_u32 s20, s20, s24
    s_lshl_b32 s20, s20, 7
    s_lshl_b32 s21, s27, 3
    s_add_u32 s20, s20, s21
    s_add_u32 s20, s20, {KVFLAG}
    v_mov_b32 v1, 0
    s_waitcnt vmcnt(0) lgkmcnt(0)
    s_mov_b64 exec, 1
    buffer_store_dwordx2 v[10:11], v1, s[12:15], s20 offen sc1
    s_mov_b64 exec, -1
    """)
    KA, V0A, V1A, IDX = 4, 5, 6, 7
    KFR, V0F, V1F, SS, TMP, CC, OO = 8, 16, 24, 32, 64, 80, 112
    NV = 160
    NQ = 2
    a(f"{L('p2')}:")
    stamp(a, 5)
    a(f"""
    s_lshr_b32 s28, s27, 2          ; hh
    s_and_b32 s29, s27, 3           ; pair
    v_mov_b32 v1, {TOK}
    ds_read_b64 v[{TMP+12}:{TMP+13}], v1
    s_lshl_b32 s20, s28, 13
    v_add_u32 v{KA}, s20, v3
    ds_read_b128 {vr(KFR,4)}, v{KA}
    ds_read_b128 {vr(KFR+4,4)}, v{KA} offset:1024
    v_and_b32 v{TMP+8}, 15, v2
    v_lshlrev_b32 v{TMP+8}, 4, v{TMP+8}
    v_lshrrev_b32 v1, 5, v2
    v_lshl_add_u32 v{TMP+8}, v1, 8, v{TMP+8}     ; d*16 + ha*256
    v_and_b32 v{TMP+10}, 11, v2
    v_cmp_eq_u32 vcc, 0, v{TMP+10}
    v_mov_b32 v1, 1024
    v_mov_b32 v{TMP+11}, 1040
    v_cndmask_b32 v1, v{TMP+11}, v1, vcc
    v_and_b32 v{TMP+10}, 16, v2
    v_cmp_eq_u32 vcc, 0, v{TMP+10}
    v_add_u32 v{TMP+9}, 512, v{TMP+8}
    s_mul_i32 s20, s28, {8*VSTR}
    s_add_u32 s20, s20, 16384
    v_cndmask_b32 v{V0A}, v1, v{TMP+8}, vcc
    v_cndmask_b32 v{V1A}, v1, v{TMP+9}, vcc
    v_add_u32 v{V0A}, s20, v{V0A}
    v_add_u32 v{V1A}, s20, v{V1A}
    v_mov_b32 v{IDX}, 0xdddddddd
    ds_read_b128 {vr(V0F,4)}, v{V0A}
    ds_read_b128 {vr(V1F,4)}, v{V1A}
    s_waitcnt lgkmcnt(2)
    """)
    for q in range(NQ):
        a(f"v_mfma_f32_32x32x16_bf16 {vr(CC+16*q,16)}, {vr(KFR,4)}, {vr(QFR+4*q,4)}, 0")
    a(f"v_readfirstlane_b32 s52, v{TMP+12}")
    a(f"v_readfirstlane_b32 s53, v{TMP+13}")
    for i in range(16 * NQ):
        a(f"v_mov_b32 v{OO+i}, 0")
    def maxtree(dst, S, init):
        if init:
            a(f"v_max3_f32 v{dst}, v{S}, v{S+1}, v{S+2}")
            rest = list(range(S+3, S+16))
        else:
            rest = list(range(S, S+16))
        while len(rest) >= 2:
            a(f"v_max3_f32 v{dst}, v{dst}, v{rest[0]}, v{rest[1]}"); rest = rest[2:]
        if rest:
            a(f"v_max_f32 v{dst}, v{dst}, v{rest[0]}")
    def setc(first_qk):
        for q in range(NQ):
            a(f"v_mov_b32 v{TMP+NQ+q}, v{TMP+q}")
        a("s_nop 1")
        for q in range(NQ):
            a(f"v_permlane32_swap_b32 v{TMP+q}, v{TMP+NQ+q}")
        a("s_nop 1")
        for q in range(NQ):
            a(f"v_max_f32 v{TMP+q}, v{TMP+q}, v{TMP+NQ+q}")
        for q in range(NQ):
            for i in range(16):
                a(f"v_mul_f32 v{CC+16*q+i}, -1.0, v{TMP+q}")
            if q == 0 and first_qk:
                a(f"""
                s_nop 1
                v_mfma_f32_32x32x16_bf16 {vr(SS,16)}, {vr(KFR,4)}, {vr(QFR,4)}, {vr(CC,16)}
                """)
    for q in range(NQ):
        maxtree(TMP+q, CC+16*q, True)
    setc(True)
    for i in range(8):
        a(f"v_mov_b32 v{SS+16+8+i}, 0")
    for i in range(4):
        a(f"v_mov_b32 v{V1F+4+i}, 0")
    a("s_mov_b32 s41, 0             ; chunk")
    a("s_mov_b32 s40, 0             ; slot")
    if OPT["PRIO"]: a("s_setprio 2")
    stamp(a, 6)
    a(".p2align 6")
    a(f"{L('p2_loop')}:")
    for t in range(8):
        for q in range(NQ):
            u = t * NQ + q
            S = SS + 16 * (u & 1)
            Sn = SS + 16 * ((u + 1) & 1)
            ex = [f"v_exp_f32 v{S+i}, v{S+i}" for i in range(16)]
            pt, pq = (t, q - 1) if q > 0 else (t - 1, NQ - 1)
            pv1 = f"v_smfmac_f32_32x32x32_bf16 {vr(OO+16*pq,16)}, {vr(V1F+4*(pt&1),4)}, {vr(Sn+8,8)}, v{IDX}"
            nt, nq = (t, q + 1) if q < NQ - 1 else (t + 1, 0)
            qk = f"v_mfma_f32_32x32x16_bf16 {vr(Sn,16)}, {vr(KFR+4*(nt&1),4)}, {vr(QFR+4*nq,4)}, {vr(CC+16*nq,16)}"
            pv0 = f"v_smfmac_f32_32x32x32_bf16 {vr(OO+16*q,16)}, {vr(V0F+4*(t&1),4)}, {vr(S,8)}, v{IDX}"
            if OPT["PRIO"]:
                if (t, q) == (3, 0): a("s_setprio 1")
                if (t, q) == (5, 1): a("s_setprio 0")
            if (t, q) == (4, 1):
                a(f"""
                s_add_u32 s40, s40, 1
                s_cmp_eq_u32 s40, 3
                s_cselect_b32 s40, 0, s40
                s_mov_b32 s42, {P2_SLOT}
                s_cselect_b32 s42, {(-2*P2_SLOT) & 0xffffffff:#x}, s42
                """)
            if q == 0:
                a("s_waitcnt lgkmcnt(0)")
            a(ex[0]); a(ex[1]); a(pv1); a(ex[2]); a(ex[3]); a(ex[4]); a(qk)
            for i in range(5, 10): a(ex[i])
            a(pv0)
            if q == 0:
                if t == 6:
                    a("s_barrier")
                    if OPT["PRIO"]: a("s_setprio 2")
                    a(f"v_add_u32 v{KA}, s42, v{KA}")
                if t == 7:
                    a(f"v_add_u32 v{V0A}, s42, v{V0A}")
                    a(f"v_add_u32 v{V1A}, s42, v{V1A}")
                a(ex[10])
                a(f"ds_read_b128 {vr(V0F+4*((t+1)&1),4)}, v{V0A} offset:{VSTR*((t+1)%8)}")
                a(ex[11]); a(ex[12])
                a(f"ds_read_b128 {vr(KFR+4*(t&1),4)}, v{KA} offset:{1024*((t+2)%8)}")
                a(ex[13]); a(ex[14])
                a(f"ds_read_b128 {vr(V1F+4*((t+1)&1),4)}, v{V1A} offset:{VSTR*((t+1)%8)}")
                a(ex[15])
            else:
                if t == 7:
                    a("s_add_u32 s41, s41, 1")
                    a("s_cmp_lt_u32 s41, 8")
                for i in range(10, 16): a(ex[i])
    a(f"s_cbranch_scc1 {L('p2_loop')}")
    stamp(a, 7)
    a(f"""
    s_nop 1
    v_smfmac_f32_32x32x32_bf16 {vr(OO+16,16)}, {vr(V1F+4,4)}, {vr(SS+16+8,8)}, v{IDX}
    s_lshl_b32 s20, s26, 1
    s_add_u32 s20, s20, s28         ; bh
    s_lshl_b32 s23, s24, 3
    s_lshl_b32 s21, s29, 1
    s_add_u32 s23, s23, s21         ; qt0
    s_mov_b32 s42, 0x5f800000       ; 2^64
    s_mov_b64 s[44:45], 0
    s_waitcnt lgkmcnt(0)
    s_nop 7
    """)
    for q in range(NQ):
        O = OO + 16 * q
        a(f"v_mul_f32 v{TMP}, 0, v{O}")
        for i in range(1, 8):
            a(f"v_fmac_f32 v{TMP}, 0, v{O+i}")
        a(f"v_add_f32 v{TMP}, v{TMP}, v{O+8}")
        a(f"v_cmp_nlt_f32 s[46:47], v{TMP}, s42")
        a("s_nop 3")
        a("s_or_b64 s[44:45], s[44:45], s[46:47]")
    if OPT["FORCEFB"]:
        a(f"s_branch {L('fallback')}")
    a(f"""
    s_cbranch_scc1 {L('fallback')}
    {L('final')}:
    """)
    for q in range(NQ):
        a(f"v_rcp_f32 v{TMP+q}, v{OO+16*q+8}")
    a(f"""
    s_lshl_b32 s30, s22, 6
    s_add_u32 s30, s30, s23         ; b*64+qt0
    s_lshl_b32 s30, s30, 5
    s_and_b32 s31, s20, 31
    s_add_u32 s30, s30, s31         ; *32 + head
    s_lshl_b32 s30, s30, 10
    s_add_u32 s30, s30, {OF}
    """)
    for q in range(NQ):
        O = OO + 16 * q
        for i in range(8):
            a(f"v_mul_f32 v{O+i}, v{O+i}, v{TMP+q}")
        for i in range(4):
            a(f"v_cvt_pk_bf16_f32 v{SS+4*q+i}, v{O+2*i}, v{O+2*i+1}")
        a(f"buffer_store_dwordx4 {vr(SS+4*q,4)}, v3, s[12:15], s30 offen sc1")
        a("s_add_u32 s30, s30, 32768")
    OFR, WFR, ACC3 = 16, 80, 96
    a(f"""
    s_lshl_b32 s20, s26, 3
    s_add_u32 s20, s20, s24
    s_lshl_b32 s20, s20, 7
    s_lshl_b32 s21, s27, 3
    s_add_u32 s20, s20, s21
    s_add_u32 s20, s20, {OFLAG}
    v_mov_b32 v10, s52
    v_mov_b32 v11, s53
    v_mov_b32 v1, 0
    s_and_b32 s30, s25, 1
    s_lshl_b32 s30, s30, 2
    s_add_u32 s30, s30, s29         ; qtl
    v_and_b32 v4, 15, v2
    v_lshrrev_b32 v5, 1, v4
    v_lshlrev_b32 v5, 10, v5        ; (i>>1)*8 WGs*128
    v_and_b32 v4, 1, v4
    v_lshl_add_u32 v5, v4, 5, v5    ; + (i&1)*32
    s_lshl_b32 s31, s22, 4
    s_lshl_b32 s32, s28, 3
    s_add_u32 s31, s31, s32         ; b*16 + 8kh
    s_lshl_b32 s31, s31, 3
    s_add_u32 s31, s31, s24
    s_lshl_b32 s31, s31, 7
    s_lshr_b32 s32, s30, 1
    s_lshl_b32 s32, s32, 3
    s_add_u32 s31, s31, s32
    s_add_u32 s31, s31, {OFLAG}
    ; O source
    s_lshl_b32 s33, s24, 3
    s_add_u32 s33, s33, s30         ; qt
    s_lshl_b32 s34, s22, 6
    s_add_u32 s34, s34, s33
    s_lshl_b32 s34, s34, 15
    s_lshl_b32 s32, s28, 14
    s_add_u32 s34, s34, s32
    s_add_u32 s34, s34, {OF}
    v_bfe_u32 v6, v2, 2, 2          ; r
    v_lshrrev_b32 v7, 5, v2         ; h
    v_lshl_add_u32 v8, v7, 2, v6
    v_lshlrev_b32 v8, 7, v8
    v_and_b32 v9, 1, v2
    v_lshlrev_b32 v9, 1, v9
    v_bfe_u32 v12, v2, 4, 1
    v_add_u32 v9, v9, v12
    v_and_b32 v12, 2, v6
    v_lshl_add_u32 v9, v12, 1, v9
    v_bfe_u32 v12, v2, 1, 1
    v_lshl_add_u32 v8, v12, 3, v8
    v_lshl_add_u32 v12, v9, 4, v8
    s_lshl_b32 s32, s28, 15
    s_add_u32 s32, s32, {WO_LDS}
    v_add_u32 v12, s32, v12         ; beta 0
    v_xor_b32 v13, 64, v12          ; beta 1
    s_waitcnt vmcnt(0)
    s_mov_b64 exec, 1
    buffer_store_dwordx2 v[10:11], v1, s[12:15], s20 offen sc1
    s_mov_b64 exec, -1
    """)
    if OPT["PRIO"]: a("s_setprio 0")
    stamp(a, 8)
    for i in range(32):
        a(f"v_mov_b32 v{ACC3+i}, 0")
    a(f"""
    s_barrier                       ; E2
    s_mov_b32 s35, 0
    {L('p3_poll')}:
    buffer_load_dwordx2 v[14:15], v5, s[12:15], s31 offen sc1
    s_add_u32 s35, s35, 1
    s_waitcnt vmcnt(0)
    v_cmp_ne_u64 vcc, s[52:53], v[14:15]
    s_cmp_gt_u32 s35, {SPIN_MAX}
    s_cbranch_scc1 {L('p3_go')}
    s_cbranch_vccz {L('p3_go')}
    s_sleep 1
    s_branch {L('p3_poll')}
    {L('p3_go')}:
    """)
    stamp(a, 9)
    for h in range(16):
        a(f"buffer_load_dwordx4 {vr(OFR+4*h,4)}, v3, s[12:15], s34 offen offset:{1024*(h%4)} sc1")
        if h % 4 == 3 and h < 15: a("s_add_u32 s34, s34, 4096")
    def reads3(h, st):
        f = WFR + 8 * st
        return [f"ds_read_b64_tr_b16 {vr(f+4*b+2*rho,2)}, v{12+b} offset:{h*2048+rho*1024}" for b in range(2) for rho in range(2)]
    for r in reads3(0, 0): a(r)
    for h in range(16):
        st = h & 1
        if h < 15:
            for r in reads3(h + 1, st ^ 1): a(r)
            a(f"s_waitcnt vmcnt({15-h}) lgkmcnt(4)")
        else:
            a("s_waitcnt vmcnt(0) lgkmcnt(0)")
        for b in range(2):
            a(f"v_mfma_f32_32x32x16_bf16 {vr(ACC3+16*b,16)}, {vr(WFR+8*st+4*b,4)}, {vr(OFR+4*h,4)}, {vr(ACC3+16*b,16)}")
    stamp(a, 10)
    a(f"""
    s_lshl_b32 s30, s27, 12
    s_xor_b32 s31, s30, 0x4000
    v_add_u32 v4, s31, v3
    v_add_u32 v5, s30, v3
    s_mov_b32 s16, s48
    s_mov_b32 s17, s49
    s_mov_b32 s18, {2048*2048}
    s_mov_b32 s19, 0x00020000
    v_and_b32 v6, 31, v2
    v_lshlrev_b32 v6, 11, v6
    v_lshl_add_u32 v6, v7, 5, v6    ; t*2048 + h*32
    s_lshl_b32 s33, s33, 16         ; qt*32*2048
    s_lshl_b32 s32, s22, 10
    s_add_u32 s33, s33, s32
    s_lshr_b32 s32, s25, 1
    s_lshl_b32 s32, s32, 7
    s_add_u32 s33, s33, s32
    s_lshl_b32 s32, s28, 6
    s_add_u32 s33, s33, s32         ; + beta*64
    s_cmp_eq_u32 s28, 0
    s_cbranch_scc1 {L('p3_k0')}
    """)
    def reduce(keep, send):
        for i in range(4):
            a(f"ds_write_b128 v4, {vr(send+4*i,4)} offset:{1024*i}")
        a("s_waitcnt lgkmcnt(0)")
        a("s_barrier")
        for i in range(4):
            a(f"ds_read_b128 {vr(OFR+4*i,4)}, v5 offset:{1024*i}")
        for i in range(4):
            a(f"s_waitcnt lgkmcnt({3-i})")
            for j in range(4):
                a(f"v_add_f32 v{OFR+4*i+j}, v{OFR+4*i+j}, v{keep+4*i+j}")
    reduce(ACC3 + 16, ACC3)
    a(f"s_branch {L('p3_out')}")
    a(f"{L('p3_k0')}:")
    reduce(ACC3, ACC3 + 16)
    a(f"{L('p3_out')}:")
    for i in range(8):
        a(f"v_cvt_pk_bf16_f32 v{WFR+i}, v{OFR+2*i}, v{OFR+2*i+1}")
    a(f"buffer_store_dwordx4 {vr(WFR,4)}, v6, s[16:19], s33 offen")
    a(f"buffer_store_dwordx4 {vr(WFR+4,4)}, v6, s[16:19], s33 offen offset:16")
    stamp(a, 11)
    if DIAG: a("s_waitcnt vmcnt(0)")
    stamp(a, 12); stamp_real(a, 15)
    diag_store(a)
    a(f"{L('end')}:")
    a("s_endpgm")

    a(f"{L('helper')}:")
    a(f"""
    s_setprio 3
    s_memrealtime s[54:55]
    v_lshlrev_b32 v3, 4, v2         ; lane*16
    v_mov_b32 v1, 0
    v_mov_b32 v6, 0
    v_mov_b32 v7, 0
    s_waitcnt lgkmcnt(0)
    s_or_b32 s54, s54, 1
    """)
    srd(a, 12, 8, WS_BYTES)
    srd(a, 16, 50, 256)
    a(f"""
    v_mov_b32 v4, s54
    v_mov_b32 v5, s55
    s_mov_b64 exec, 1
    buffer_atomic_cmpswap_x2 v[4:7], v1, s[16:19], 0 offen sc0
    s_mov_b64 exec, -1
    v_mov_b32 v8, 0x3f803f80
    v_mov_b32 v9, 0x3f803f80
    v_mov_b32 v10, 0x3f803f80
    v_mov_b32 v11, 0x3f803f80
    v_mov_b32 v12, 0
    v_mov_b32 v13, 0
    v_mov_b32 v14, 0
    v_mov_b32 v15, 0
    v_and_b32 v16, 15, v2
    v_mul_u32_u24 v16, {VSTR}, v16
    v_lshrrev_b32 v17, 4, v2
    v_mul_u32_u24 v17, {P2_SLOT}, v17
    v_add3_u32 v16, v16, v17, v1
    v_add_u32 v16, {16384+1024}, v16
    s_cmp_eq_u32 s22, 0
    s_cselect_b32 s4, s40, s46      ; wo
    s_cselect_b32 s5, s41, s47
    s_mov_b32 s6, {512*1024}
    s_mov_b32 s7, 0x00020000
    """)
    for i in range(8):
        a("s_barrier")
    a(f"""
    s_mov_b64 exec, 0xffff
    ds_write_b128 v16, v[8:11]
    ds_write_b128 v16, v[12:15] offset:16
    s_waitcnt vmcnt(0)
    v_readfirstlane_b32 s52, v4
    v_readfirstlane_b32 s53, v5
    s_nop 3
    s_or_b32 s20, s52, s53
    s_cmp_eq_u32 s20, 0
    s_cselect_b32 s52, s54, s52
    s_cselect_b32 s53, s55, s53
    v_mov_b32 v4, s52
    v_mov_b32 v5, s53
    v_mov_b32 v17, {TOK}
    s_mov_b64 exec, 1
    ds_write_b64 v17, v[4:5]
    s_waitcnt lgkmcnt(0)
    s_barrier                       ; E1
    s_mov_b32 s20, 0xffff0000
    s_mov_b32 s21, 0x0000ffff
    s_mov_b64 exec, s[20:21]
    ds_write_b128 v16, v[8:11]
    ds_write_b128 v16, v[12:15] offset:16
    s_mov_b64 exec, -1
    v_and_b32 v18, 3, v2
    v_lshlrev_b32 v18, 3, v18
    s_mov_b32 s41, 1                ; chunk
    s_mov_b32 s40, {P2_SLOT}
    """)
    stamp(a, 4)
    a(f"""
    {L('h_loop')}:
    s_add_u32 s20, s24, s41
    s_and_b32 s20, s20, 7
    s_lshl_b32 s21, s26, 3
    s_add_u32 s21, s21, s20
    s_lshl_b32 s21, s21, 7
    s_add_u32 s21, s21, {KVFLAG}
    s_mov_b32 s35, 0
    {L('h_poll')}:
    buffer_load_dwordx2 v[14:15], v18, s[12:15], s21 offen sc1
    s_add_u32 s35, s35, 1
    s_waitcnt vmcnt(0)
    v_cmp_ne_u64 vcc, s[52:53], v[14:15]
    s_cmp_gt_u32 s35, {SPIN_MAX}
    s_cbranch_scc1 {L('h_go')}
    s_cbranch_vccz {L('h_go')}
    s_sleep 1
    s_branch {L('h_poll')}
    {L('h_go')}:
    s_lshl_b32 s30, s26, 17         ; (b*16+g2)*128KB
    s_lshl_b32 s31, s20, 13
    s_add_u32 s30, s30, s31
    s_mov_b32 s33, s40              ; K dst
    s_add_u32 s34, s40, 16384       ; V dst
    s_mov_b32 s32, 0
    {L('h_grp')}:
    s_mov_b32 m0, s33
    s_add_u32 s31, s30, {VF}
    """)
    for i in range(4):
        a(f"buffer_load_dwordx4 v3, s[12:15], s30 offen offset:{1024*i} sc1 lds")
    for i in range(4):
        a(f"s_add_u32 m0, s34, {(VSTR-1024)*i}")
        a("s_nop 0")
        a(f"buffer_load_dwordx4 v3, s[12:15], s31 offen offset:{1024*i} sc1 lds")
    a(f"""
    s_add_u32 s33, s33, 4096
    s_add_u32 s34, s34, {4*VSTR}
    s_add_u32 s32, s32, 1
    s_cmp_eq_u32 s32, 2
    s_mov_b32 s31, 4096
    s_cselect_b32 s31, {65536-4096}, s31
    s_add_u32 s30, s30, s31
    s_cmp_lt_u32 s32, 4
    s_cbranch_scc1 {L('h_grp')}
    s_add_u32 s40, s40, {P2_SLOT}
    s_cmp_eq_u32 s40, {3*P2_SLOT}
    s_cselect_b32 s40, 0, s40
    s_add_u32 s41, s41, 1
    s_waitcnt vmcnt(0) lgkmcnt(0)
    """)
    if DIAG:
        a(f"s_cmp_eq_u32 s41, 2\ns_cbranch_scc0 {L('h_nostamp')}")
        stamp(a, 5)
        a(f"{L('h_nostamp')}:")
    a(f"""
    s_barrier
    s_cmp_lt_u32 s41, 8
    s_cbranch_scc1 {L('h_loop')}
    v_lshrrev_b32 v4, 3, v2
    v_and_b32 v5, 7, v2
    v_bfe_u32 v6, v2, 4, 1
    v_lshlrev_b32 v6, 2, v6
    v_xor_b32 v5, v5, v6
    v_lshlrev_b32 v5, 4, v5
    v_lshl_add_u32 v5, v4, 10, v5
    v_add_u32 v6, 7168, v5
    v_add_u32 v7, {2*7168}, v5
    v_add_u32 v8, {3*7168}, v5
    s_lshr_b32 s30, s25, 1
    s_lshl_b32 s30, s30, 7
    s_mov_b32 s33, {WO_LDS}
    {L('h_wo')}:
    s_mov_b32 m0, s33
    s_add_u32 s33, s33, 4096
    """)
    for i in range(4):
        a(f"buffer_load_dwordx4 v{5+i}, s[4:7], s30 offen offset:{1024*i} lds")
    a(f"""
    s_add_u32 s30, s30, 32768
    s_waitcnt vmcnt(40)
    s_cmp_lt_u32 s33, {WO_LDS+65536}
    s_cbranch_scc1 {L('h_wo')}
    s_barrier                       ; S_7
    s_waitcnt vmcnt(0)
    """)
    stamp(a, 8)
    a("s_barrier                       ; E2")
    stamp(a, 12); stamp_real(a, 15)
    diag_store(a)
    a("s_endpgm")

    a(f"{L('fallback')}:")
    a(f"""
    s_lshl_b32 s30, s20, 16
    s_mov_b32 s41, 0
    """)
    for q in range(NQ):
        a(f"v_mov_b32 v{TMP+q}, 0xff800000")
    a(f"""
    {L('fb1')}:
    buffer_load_dwordx4 {vr(KFR,4)}, v3, s[12:15], s30 offen sc1
    s_add_u32 s30, s30, 1024
    s_waitcnt vmcnt(0)
    """)
    for q in range(NQ):
        a(f"v_mfma_f32_32x32x16_bf16 {vr(CC+16*q,16)}, {vr(KFR,4)}, {vr(QFR+4*q,4)}, 0")
    a("s_nop 15")
    for q in range(NQ):
        maxtree(TMP+q, CC+16*q, False)
    a(f"""
    s_add_u32 s41, s41, 1
    s_cmp_lt_u32 s41, 64
    s_cbranch_scc1 {L('fb1')}
    """)
    setc(False)
    for i in range(16 * NQ):
        a(f"v_mov_b32 v{OO+i}, 0")
    for i in range(4):
        a(f"v_mov_b32 v{V0F+i}, 0x3f803f80")
        a(f"v_mov_b32 v{V1F+i}, 0x3f803f80")
    a(f"""
    v_and_b32 v{TMP+8}, 15, v2
    v_lshlrev_b32 v{TMP+8}, 4, v{TMP+8}
    v_lshrrev_b32 v1, 5, v2
    v_lshl_add_u32 v{TMP+8}, v1, 8, v{TMP+8}
    s_lshl_b32 s30, s20, 16
    s_mov_b32 s41, 0
    s_mov_b32 s46, 0x0000ffff
    s_mov_b32 s47, 0x0000ffff
    {L('fb2')}:
    s_add_u32 s31, s30, {VF}
    buffer_load_dwordx4 {vr(KFR,4)}, v3, s[12:15], s30 offen sc1
    s_mov_b64 exec, s[46:47]
    buffer_load_dwordx4 {vr(V0F,4)}, v{TMP+8}, s[12:15], s31 offen sc1
    buffer_load_dwordx4 {vr(V1F,4)}, v{TMP+8}, s[12:15], s31 offen offset:512 sc1
    s_mov_b64 exec, -1
    s_add_u32 s30, s30, 1024
    s_waitcnt vmcnt(0)
    """)
    for q in range(NQ):
        a(f"v_mfma_f32_32x32x16_bf16 {vr(SS+16*q,16)}, {vr(KFR,4)}, {vr(QFR+4*q,4)}, {vr(CC+16*q,16)}")
    a("s_nop 15")
    for i in range(32):
        a(f"v_exp_f32 v{SS+i}, v{SS+i}")
    a("s_nop 1")
    for q in range(NQ):
        a(f"v_smfmac_f32_32x32x32_bf16 {vr(OO+16*q,16)}, {vr(V0F,4)}, {vr(SS+16*q,8)}, v{IDX}")
        a(f"v_smfmac_f32_32x32x32_bf16 {vr(OO+16*q,16)}, {vr(V1F,4)}, {vr(SS+16*q+8,8)}, v{IDX}")
    a(f"""
    s_add_u32 s41, s41, 1
    s_cmp_lt_u32 s41, 64
    s_nop 15
    s_cbranch_scc1 {L('fb2')}
    s_branch {L('final')}
    """)
    return n, NV

def main(path):
    a = A()
    n, nv = gen(a)
    head = f"""; Two independent MHA blocks (QKV projection -> softmax attention -> output projection), concatenated.
; @launch grid=(256,1,1) block=(576,1,1) lds={LDS_BYTES}
.amdgcn_target "amdgcn-amd-amdhsa--gfx950"
.text
"""
    tail = f""".section .rodata,"a"
.p2align 6
.amdhsa_kernel {n}
  .amdhsa_next_free_vgpr {nv}
  .amdhsa_next_free_sgpr 102
  .amdhsa_accum_offset {(nv+3)//4*4}
  .amdhsa_group_segment_fixed_size 0
  .amdhsa_kernarg_size 72
  .amdhsa_user_sgpr_count 2
  .amdhsa_user_sgpr_kernarg_segment_ptr 1
  .amdhsa_system_sgpr_workgroup_id_x 1
.end_amdhsa_kernel
"""
    open(path, "w").write(head + a.text() + tail)

if __name__ == "__main__":
    for arg in sys.argv[2:]:
        if arg == "diag": DIAG = True
        else:
            k, v = arg.split("="); OPT[k] = int(v)
    main(sys.argv[1] if len(sys.argv) > 1 else f"cdna_kernels/{NAME}.s")
```

```python
import sys
HEAD = """.amdgcn_target "amdgcn-amd-amdhsa--gfx950"
.text
"""
kernels = []
def kern(name, body, niter=200, body2=None, split=None, vgpr=128, pre=""):
    s = []
    s.append(f".globl {name}\n.p2align 8\n.type {name},@function\n{name}:")
    s.append("  s_load_dwordx4 s[4:7], s[0:1], 0")
    s.append("  v_lshrrev_b32 v1, 6, v0")
    s.append("  s_nop 1")
    s.append("  v_readfirstlane_b32 s20, v1")
    for i in range(2, vgpr):
        s.append(f"  v_mov_b32 v{i}, 0x{0x3f000000 + i*0x1234:x}" if i % 2 else f"  v_mov_b32 v{i}, 0xbf{(i*0x2345)&0xffffff:06x}")
    s.append("  v_lshlrev_b32 v2, 4, v0")
    s.append(pre)
    s.append("  s_waitcnt lgkmcnt(0)")
    s.append("  s_barrier")
    s.append("  s_memtime s[8:9]")
    s.append("  s_memrealtime s[10:11]")
    s.append("  s_waitcnt lgkmcnt(0)")
    s.append(f"  s_mov_b32 s12, {niter}")
    if body2 is not None:
        s.append(f"  s_and_b32 s21, s20, {split}")
        s.append(f"  s_cmp_lg_u32 s21, 0")
        s.append(f"  s_cbranch_scc1 {name}_L2")
    s.append(".p2align 6")
    s.append(f"{name}_L1:")
    s += ["  " + b for b in body]
    s.append("  s_sub_u32 s12, s12, 1")
    s.append("  s_cmp_lg_u32 s12, 0")
    s.append(f"  s_cbranch_scc1 {name}_L1")
    if body2 is not None:
        s.append(f"  s_branch {name}_done")
        s.append(".p2align 6")
        s.append(f"{name}_L2:")
        s += ["  " + b for b in body2]
        s.append("  s_sub_u32 s12, s12, 1")
        s.append("  s_cmp_lg_u32 s12, 0")
        s.append(f"  s_cbranch_scc1 {name}_L2")
    s.append(f"{name}_done:")
    s.append("  s_nop 15\n  s_nop 15")
    s.append("  s_memtime s[14:15]")
    s.append("  s_memrealtime s[16:17]")
    s.append("  s_waitcnt lgkmcnt(0)")
    s.append("  s_sub_u32 s14, s14, s8\n  s_subb_u32 s15, s15, s9")
    s.append("  s_sub_u32 s16, s16, s10\n  s_subb_u32 s17, s17, s11")
    wpb = int(name.split("_w")[-1])
    s.append(f"  s_mul_i32 s22, s2, {wpb}")
    s.append("  s_add_u32 s22, s22, s20")
    s.append("  s_lshl_b32 s22, s22, 4")
    s.append("  v_mov_b32 v4, s14\n  v_mov_b32 v5, s15\n  v_mov_b32 v6, s16\n  v_mov_b32 v7, s17")
    s.append("  v_mov_b32 v8, s22")
    s.append("  v_and_b32 v9, 63, v0")
    s.append("  v_cmp_eq_u32 vcc, 0, v9")
    s.append("  s_and_saveexec_b64 s[24:25], vcc")
    s.append("  global_store_dwordx4 v8, v[4:7], s[4:5]")
    s.append("  s_endpgm")
    kd = f""".section .rodata,"a"
.p2align 6
.amdhsa_kernel {name}
  .amdhsa_next_free_vgpr {vgpr}
  .amdhsa_next_free_sgpr 40
  .amdhsa_accum_offset {(vgpr+3)//4*4}
  .amdhsa_group_segment_fixed_size 0
  .amdhsa_kernarg_size 16
  .amdhsa_user_sgpr_count 2
  .amdhsa_user_sgpr_kernarg_segment_ptr 1
  .amdhsa_system_sgpr_workgroup_id_x 1
.end_amdhsa_kernel
.text
"""
    kernels.append((name, "\n".join(s) + "\n" + kd, vgpr))

def finish(path):
    out = HEAD
    for n, t, v in kernels:
        out += t
    out += ".amdgpu_metadata\n---\namdhsa.version: [1, 2]\namdhsa.kernels:\n"
    for n, t, v in kernels:
        out += f"""  - .name: {n}
    .symbol: {n}.kd
    .kernarg_segment_size: 16
    .kernarg_segment_align: 8
    .group_segment_fixed_size: 0
    .private_segment_fixed_size: 0
    .wavefront_size: 64
    .sgpr_count: 46
    .vgpr_count: {v}
    .max_flat_workgroup_size: 1024
    .args:
      - {{.name: kernargs, .size: 16, .offset: 0, .value_kind: by_value}}
"""
    out += "...\n.end_amdgpu_metadata\n"
    open(path, "w").write(out)
```

```python
import gen1
HEAD = gen1.HEAD
kernels = []
def mk(name, nw, pattern, depth, fl=""):
    s = []
    a = s.append
    a(f".globl {name}\n.p2align 8\n.type {name},@function\n{name}:")
    a("  s_load_dwordx4 s[4:7], s[0:1], 0")
    a("  v_lshrrev_b32 v1, 6, v0\n  v_and_b32 v2, 63, v0\n  s_nop 0\n  v_readfirstlane_b32 s20, v1")
    a("  s_bfe_u32 s21, s2, 0x20003\n  s_lshl_b32 s21, s21, 18\n  s_and_b32 s22, s2, 7\n  s_lshl_b32 s22, s22, 20\n  s_add_u32 s21, s21, s22")
    per = 256 // nw
    a(f"  s_mul_i32 s22, s20, {per*1024}\n  s_add_u32 s21, s21, s22")
    a(f"  s_mul_i32 s23, s20, {min(per,16)*1024}")
    if pattern in ("dma_c", "reg_c"):
        a("  v_lshlrev_b32 v3, 4, v2")
    elif pattern in ("dma_s",):
        a("  v_lshrrev_b32 v3, 3, v2\n  v_lshlrev_b32 v3, 10, v3\n  v_and_b32 v4, 7, v2\n  v_lshl_add_u32 v3, v4, 4, v3")
    elif pattern in ("dma_h",):
        a("  v_lshrrev_b32 v3, 2, v2\n  v_lshlrev_b32 v3, 10, v3\n  v_and_b32 v4, 3, v2\n  v_lshl_add_u32 v3, v4, 4, v3")
    elif pattern == "reg_f":
        a("  v_and_b32 v3, 31, v2\n  v_lshlrev_b32 v3, 10, v3\n  v_lshrrev_b32 v4, 5, v2\n  v_lshl_add_u32 v3, v4, 6, v3")
    elif pattern == "reg_f2":
        a("  v_and_b32 v3, 31, v2\n  v_lshlrev_b32 v3, 10, v3\n  v_lshrrev_b32 v4, 5, v2\n  v_lshl_add_u32 v3, v4, 4, v3")
    a("  s_waitcnt lgkmcnt(0)")
    a("  s_mov_b32 s12, s6\n  s_mov_b32 s13, s7\n  s_mov_b32 s14, 0x4000000\n  s_mov_b32 s15, 0x00020000")
    a("  s_barrier")
    n = per
    for p in range(2):
        a(f"  s_memtime s[{30+4*p}:{31+4*p}]\n  s_waitcnt lgkmcnt(0)")
        for i in range(n):
            if pattern in ("dma_c", "reg_c"): off = i * 1024
            elif pattern == "dma_s":
                g = n // 8
                off = (i % g) * 8192 + (i // g) * 128
            elif pattern == "dma_h":
                g = n // 16
                off = (i % g) * 16384 + (i // g) * 64
            elif pattern == "reg_f":
                off = (i // 32) * 32768 + ((i % 32) // 4) * 128 + (i % 4) * 16
            elif pattern == "reg_f2":
                off = (i // 32) * 32768 + (i % 32) * 32
            a(f"  s_add_u32 s24, s21, {off}")
            if pattern.startswith("dma"):
                a(f"  s_add_u32 m0, s23, {(i % min(per,16))*1024}\n  s_nop 0")
                a(f"  buffer_load_dwordx4 v3, s[12:15], s24 offen {fl} lds")
            else:
                r = 8 + 4 * (i % 32)
                a(f"  buffer_load_dwordx4 v[{r}:{r+3}], v3, s[12:15], s24 offen")
            if i >= depth: a(f"  s_waitcnt vmcnt({depth})")
        a("  s_waitcnt vmcnt(0)")
        a("  s_barrier")
        a(f"  s_memtime s[{32+4*p}:{33+4*p}]\n  s_waitcnt lgkmcnt(0)")
    a("  s_sub_u32 s14, s32, s30\n  s_sub_u32 s16, s36, s34")
    a(f"  s_mul_i32 s22, s2, {nw}\n  s_add_u32 s22, s22, s20\n  s_lshl_b32 s22, s22, 4")
    a("  v_mov_b32 v4, s14\n  v_mov_b32 v5, 0\n  v_mov_b32 v6, s16\n  v_mov_b32 v7, 0\n  v_mov_b32 v8, s22")
    a("  v_cmp_eq_u32 vcc, 0, v2\n  s_and_saveexec_b64 s[24:25], vcc\n  global_store_dwordx4 v8, v[4:7], s[4:5]\n  s_endpgm")
    kd = f""".section .rodata,"a"
.p2align 6
.amdhsa_kernel {name}
  .amdhsa_next_free_vgpr 144
  .amdhsa_next_free_sgpr 48
  .amdhsa_accum_offset 144
  .amdhsa_group_segment_fixed_size 0
  .amdhsa_kernarg_size 16
  .amdhsa_user_sgpr_count 2
  .amdhsa_user_sgpr_kernarg_segment_ptr 1
  .amdhsa_system_sgpr_workgroup_id_x 1
.end_amdhsa_kernel
.text
"""
    gen1.kernels.append((name, "\n".join(s) + "\n" + kd, 144))
args = []
for pat in ("dma_s", "dma_h"):
    for tag, fl in (("p", ""), ("nt", "nt"), ("sc1", "sc1"), ("sc0", "sc0"), ("sc01", "sc0 sc1")):
        nm = f"{pat}_{tag}_w4"
        mk(nm, 4, pat, 22, fl)
        args.append(f"{nm}:256:256:131072")
gen1.finish("mb8.s")
open("mb8.args", "w").write(" ".join(args))
```
